```python
import torch

def _softmax(x, axis=-1):
    return torch.softmax(x, dim=axis)

def _gelu(x):
    return torch.nn.functional.gelu(x, approximate='tanh')

def _silu(x):
    return torch.nn.functional.silu(x)

def _sigmoid(x):
    return torch.sigmoid(x)

def _layernorm(x, axis=-1, eps=1e-05):
    m = x.mean(dim=axis, keepdim=True)
    v = x.var(dim=axis, keepdim=True, unbiased=False)
    return (x - m) / torch.sqrt(v + eps)

def _scatter_add(tgt, idx, src, axis=0):
    return tgt.clone().index_add_(axis, idx, src)

def _segment_sum(src, seg, n):
    out = torch.zeros((n,) + src.shape[1:], dtype=src.dtype)
    return out.index_add_(0, seg, src)

def _pad(x, pw):
    flat = tuple((v for pair in reversed(pw) for v in pair))
    return torch.nn.functional.pad(x, flat)
kernel_name = 'adaLN_cond__sliding_block_cached__swiglu_ffn__decode'

def setup_inputs():

    _w = lambda a: (lambda t: t.to(torch.bfloat16) if t.is_floating_point() else t)(torch.as_tensor(a))

    def _A_setup():
        B, Sq, D = (2, 1, 512)
        Hq, Hkv, Sk, Dh = (32, 8, 32768, 128)
        assert Hq % Hkv == 0, (Hq, Hkv)
        return {'x': _w((lambda *s: torch.randn(*s, dtype=torch.bfloat16) * 0.05)(B, Sq, D)), 'k_cache': _w((lambda *s: torch.randn(*s, dtype=torch.bfloat16) * 3.2)(B, Hkv, Sk, Dh)), 'v_cache': _w((lambda *s: torch.randn(*s, dtype=torch.bfloat16) * 0.4)(B, Hkv, Sk, Dh)), 'wq': _w((lambda *s: torch.randn(*s, dtype=torch.bfloat16) * 3.2)(D, Hq * Dh) * D ** (-0.5)), 'wo': _w((lambda *s: torch.randn(*s, dtype=torch.bfloat16) * 0.4)(Hq * Dh, D) * (Hq * Dh) ** (-0.5))}
    _A_in = _A_setup()

    def _B_setup():
        B, S, D, F = (2, 1, 512, 1792)
        return {'x': _w((lambda *s: torch.randn(*s, dtype=torch.bfloat16) * 0.05)(B, S, D)), 'w_gate': _w((lambda *s: torch.randn(*s, dtype=torch.bfloat16) * 0.05)(D, F)), 'w_up': _w((lambda *s: torch.randn(*s, dtype=torch.bfloat16) * 0.05)(D, F)), 'w_down': _w((lambda *s: torch.randn(*s, dtype=torch.bfloat16) * 0.05)(F, D))}
    _B_in = _B_setup()
    return {'A_x': _A_in['x'], 'A_k_cache': _A_in['k_cache'], 'A_v_cache': _A_in['v_cache'], 'A_wq': _A_in['wq'], 'A_wo': _A_in['wo'], 'B_x': _B_in['x'], 'B_w_gate': _B_in['w_gate'], 'B_w_up': _B_in['w_up'], 'B_w_down': _B_in['w_down'], 'c': _w((lambda *s: torch.randn(*s, dtype=torch.bfloat16) * 0.2)(2, 512) * 8.0), 'w_mod': _w((lambda *s: torch.randn(*s, dtype=torch.bfloat16) * 0.2)(512, 6 * 512) * 512 ** (-0.5) * 8.0)}

def reference(A_x, A_k_cache, A_v_cache, A_wq, A_wo, B_x, B_w_gate, B_w_up, B_w_down, c, w_mod):

    def _A_ref(x, k_cache, v_cache, wq, wo):
        B, Sq, D = x.shape
        Hq, Dh = (32, 128)
        Hkv, Sk = (k_cache.shape[1], k_cache.shape[2])
        W = min(4096, max(256, Sk // 4))
        rep = Hq // Hkv
        q = (lambda x, *d: x.permute(*d))((x @ wq).reshape(B, Sq, Hq, Dh), 0, 2, 1, 3)
        k = (lambda x, n, axis: torch.repeat_interleave(x, n, dim=axis))(k_cache[:, :, Sk - W:, :], rep, axis=1)
        v = (lambda x, n, axis: torch.repeat_interleave(x, n, dim=axis))(v_cache[:, :, Sk - W:, :], rep, axis=1)
        scores = torch.einsum('bhqd,bhkd->bhqk', q, k) * Dh ** (-0.5)
        p = _softmax(scores, axis=-1)
        o = torch.einsum('bhqk,bhkd->bhqd', p, v)
        return (lambda x, *d: x.permute(*d))(o, 0, 2, 1, 3).reshape(B, Sq, Hq * Dh) @ wo

    def _B_ref(x, w_gate, w_up, w_down):
        g = _silu(x @ w_gate)
        u = x @ w_up
        return g * u @ w_down
    x = A_x
    mod = (_silu(c) @ w_mod).reshape(c.shape[0], 6, 1, -1)
    sa, ca, ga, sb, cb, gb = (mod[:, 0].clone(), mod[:, 1].clone(), mod[:, 2].clone(), mod[:, 3].clone(), mod[:, 4].clone(), mod[:, 5].clone())
    h = _layernorm(x, axis=-1) * (1 + ca) + sa
    x = x + ga * _A_ref(h, A_k_cache, A_v_cache, A_wq, A_wo)
    h = _layernorm(x, axis=-1) * (1 + cb) + sb
    x = x + gb * _B_ref(h, B_w_gate, B_w_up, B_w_down)
    return x
```

```python
import re

TRANS = ("v_exp_f32", "v_log_f32", "v_rcp_f32", "v_rsq_f32", "v_sqrt_f32", "v_sin_f32", "v_cos_f32")

def regs_of(tok):
    tok = tok.strip()
    tok = re.sub(r"^-|^abs\(|\)$|^\|| \|$", "", tok)
    tok = tok.strip("|")
    m = re.fullmatch(r"([vs])(\d+)", tok)
    if m: return {(m.group(1), int(m.group(2)))}
    m = re.fullmatch(r"([vs])\[(\d+):(\d+)\]", tok)
    if m: return {(m.group(1), i) for i in range(int(m.group(2)), int(m.group(3)) + 1)}
    if tok in ("vcc", "vcc_lo", "vcc_hi"): return {("vcc", 0)}
    if tok in ("exec", "exec_lo", "exec_hi"): return {("exec", 0)}
    if tok == "m0": return {("m0", 0)}
    return set()

class Ins:
    def __init__(self, text):
        self.text = text
        t = text.split(";")[0].strip()
        self.label = t.endswith(":")
        self.empty = (t == "" or t.startswith("."))
        self.op = ""; self.w = set(); self.r = set(); self.kind = "none"; self.srcc = set(); self.ab = set()
        self.dpp = False; self.target = None; self.nop = 0; self.storedata = set(); self.wide = False
        if self.label or self.empty: return
        sp = t.split(None, 1)
        op = sp[0]; self.op = op
        rest = sp[1] if len(sp) > 1 else ""
        ops = [x.strip() for x in re.split(r",(?![^\[]*\])", rest)] if rest else []
        mods = ""
        if ops:
            last = ops[-1].split(None, 1)
            ops[-1] = last[0]; mods = last[1] if len(last) > 1 else ""
        self.mods = mods
        R = [regs_of(x) for x in ops]
        U = lambda l: set().union(*l) if l else set()
        if op == "s_nop":
            self.kind = "salu"; self.nop = int(ops[0], 0)
        elif op.startswith("s_cbranch") or op == "s_branch":
            self.kind = "branch"; self.target = ops[0]
        elif op.startswith("v_mfma"):
            self.kind = "mfma"; self.w = R[0]; self.ab = R[1] | R[2]; self.srcc = R[3]; self.r = self.ab | self.srcc
        elif op.startswith("v_"):
            self.kind = "valu"
            self.dpp = op.endswith("_dpp") or "row_" in mods or "quad_perm" in mods
            if op.startswith("v_permlane"):
                self.w = R[0] | R[1]; self.r = R[0] | R[1]; self.kind = "permlane"
            elif op.startswith("v_swap"):
                self.w = R[0] | R[1]; self.r = R[0] | R[1]
            elif op.startswith("v_cmp"):
                self.w = R[0]; self.r = U(R[1:])
            elif op.startswith("v_readlane") or op.startswith("v_readfirstlane"):
                self.w = R[0]; self.r = U(R[1:]); self.kind = "readlane"
            elif "_co_" in op:
                self.w = R[0] | R[1]; self.r = U(R[2:])
            else:
                self.w = R[0]; self.r = U(R[1:])
                if op.startswith("v_fmac") or op.startswith("v_mac") or (self.dpp and op.startswith("v_mov")): self.r |= R[0]
        elif op in ("buffer_wbl2", "buffer_inv"):
            self.kind = "salu"
        elif op.startswith("buffer_") or op.startswith("global_"):
            self.kind = "vmem"
            lds = re.search(r"\blds\b", mods) is not None
            if "_store" in op or "atomic" in op:
                self.r = U(R)
                self.storedata = R[0] if op.startswith("buffer_") else R[1]
                self.wide = op.endswith("x4") or op.endswith("x3")
            elif lds:
                self.r = U(R) | {("m0", 0)}; self.kind = "vmem_lds"
            else:
                self.w = R[0]; self.r = U(R[1:])
        elif op.startswith("ds_"):
            self.kind = "ds"
            if op.startswith("ds_read") or "_rtn" in op or "permute" in op or "swizzle" in op:
                self.w = R[0]; self.r = U(R[1:])
            else:
                self.r = U(R)
        elif op.startswith("s_"):
            self.kind = "salu"
            if op.startswith("s_cmp") or op in ("s_waitcnt", "s_barrier", "s_endpgm", "s_setprio", "s_sleep"):
                self.r = U(R)
            else:
                self.w = R[0] if R else set(); self.r = U(R[1:])
                if "saveexec" in op: self.w |= {("exec", 0)}
        else:
            raise ValueError("unknown op " + text)

VALUK = ("valu", "permlane", "readlane")

def need(p, c):
    n = 0
    pv = {x for x in p.w if x[0] == "v"}
    ps = {x for x in p.w if x[0] in ("s", "vcc")}
    if p.kind in VALUK:
        if c.kind == "mfma" and pv & c.r: n = max(n, 2)
        if c.kind in VALUK and c.dpp and pv & c.r: n = max(n, 2)
        if c.kind == "permlane" and pv & c.r: n = max(n, 2)
        if c.kind == "readlane" and pv & c.r: n = max(n, 1)
        if p.op.replace("_e32", "").replace("_e64", "") in TRANS and c.kind in VALUK + ("mfma",) and pv & c.r: n = max(n, 1)
        if ps:
            cr = set(c.r)
            if c.kind in VALUK and ps & cr: n = max(n, 4 if c.kind == "readlane" else 2)
            if c.kind in ("vmem", "vmem_lds") and ps & cr: n = max(n, 5)
    if p.kind == "mfma":
        if c.kind == "mfma":
            if pv & c.ab: n = max(n, 8)
            if pv & c.srcc and c.srcc != p.w: n = max(n, 6)
            if pv & c.w and c.srcc != p.w: n = max(n, 8)
        elif c.kind in VALUK:
            if pv & (c.r | c.w): n = max(n, 8)
            if p.srcc & c.w: n = max(n, 3)
        elif c.kind in ("vmem", "vmem_lds", "ds"):
            if pv & (c.r | c.w): n = max(n, 8)
    if p.kind == "vmem" and p.wide and p.storedata & c.w:
        n = max(n, 2 if c.kind in VALUK else 1)
    if p.kind == "salu" and ("m0", 0) in p.w and c.kind == "vmem_lds": n = max(n, 1)
    return n

def pad(lines, maxws=8):
    ins = [Ins(l) for l in lines]
    def index():
        labels = {i.text.split(";")[0].strip()[:-1]: k for k, i in enumerate(ins) if i.label}
        preds = {}
        for k, i in enumerate(ins):
            if i.kind == "branch" and i.target in labels: preds.setdefault(labels[i.target], []).append(k)
        return preds
    for _ in range(4):
        preds = index()
        changed = False
        k = 0
        while k < len(ins):
            c = ins[k]
            if not (c.label or c.empty) and c.kind != "branch" and c.op != "s_nop":
                worst = 0
                stack = [(k - 1, 0, False)]
                seen = set()
                while stack:
                    j, d, via = stack.pop()
                    while j >= 0 and d < maxws:
                        if (j, d) in seen and not via: break
                        seen.add((j, d))
                        p = ins[j]
                        if p.label:
                            for b in preds.get(j, []): stack.append((b, d, True))
                            j -= 1; continue
                        if p.empty: j -= 1; continue
                        if p.op in ("s_branch", "s_endpgm") and not via: break
                        via = False
                        worst = max(worst, need(p, c) - d)
                        d += (1 + p.nop) if p.op == "s_nop" else 1
                        j -= 1
                if worst > 0:
                    ins.insert(k, Ins(f"s_nop {worst-1}")); changed = True
                    preds = index(); k += 1
            k += 1
        if not changed: break
    return [i.text for i in ins]
```

```python
import sys
sys.path.insert(0, "gen")
from asmlib import pad

NAME = "adaLN_cond__sliding_block_cached__swiglu_ffn__decode"
HEADER = open("cdna_kernels/" + NAME + ".s.ref").read().split("; Override launch")[0]

HM_E, HQ, HML, HA, HW, HM_L, HF, STAMP = 0x10000, 0x20000, 0x30000, 0x40000, 0xB0000, 0xC0000, 0xD0000, 0x200000
WS_BYTES = 0x400000
NW = 11
ML = 0
CNT = 384
ST = 512
SH = 1024
RED = SH + 4096
OP = RED + 3 * 4096
KT = OP + 12 * 2048
LDS_BYTES = KT + NW * 8192
assert KT % 256 == 0
LOG2E = "0x3fb8aa3b"
POLL_MAX = 1 << 16

def gen(stamps=False, nt="nt", dry=True):
    o = []
    def a(s):
        for l in s.strip().split("\n"):
            o.append(l.strip())
    uid = [0]
    def lab(p):
        uid[0] += 1
        return f"L_{p}{uid[0]}"
    def stamp(k):
        if stamps: a(f"s_memrealtime s[{84+2*k}:{85+2*k}]")
    def srd(q, ptr, size):
        a(f"s_mov_b32 s{q}, s{ptr}\ns_mov_b32 s{q+1}, s{ptr+1}\ns_mov_b32 s{q+2}, {size:#x}\ns_mov_b32 s{q+3}, 0x00020000")
    P_X, P_K, P_V, P_WQ, P_WO, P_WG, P_WU, P_WD, P_C, P_WM, P_OUT, P_WS = 36, 38, 40, 42, 44, 48, 50, 52, 54, 56, 58, 62
    SA, SB, SW, SC, SD = "s[8:11]", "s[12:15]", "s[16:19]", "s[20:23]", "s[24:27]"
    def round2(d0, d1, s0, s1, t):
        a(f"v_cvt_pk_bf16_f32 v{t}, v{s0}, v{s1}\nv_lshlrev_b32 v{d0}, 16, v{t}\nv_and_b32 v{d1}, s70, v{t}")
    def round4(d, s, t):
        a(f"v_cvt_pk_bf16_f32 v{t}, v{s}, v{s+1}\nv_cvt_pk_bf16_f32 v{t+1}, v{s+2}, v{s+3}")
        a(f"v_lshlrev_b32 v{d}, 16, v{t}\nv_and_b32 v{d+1}, s70, v{t}\nv_lshlrev_b32 v{d+2}, 16, v{t+1}\nv_and_b32 v{d+3}, s70, v{t+1}")
    def unpack4(d, s):
        a(f"v_lshlrev_b32 v{d}, 16, v{s}\nv_and_b32 v{d+1}, s70, v{s}\nv_lshlrev_b32 v{d+2}, 16, v{s+1}\nv_and_b32 v{d+3}, s70, v{s+1}")
    def tagsetup():
        a("""s_waitcnt lgkmcnt(0)
        s_mul_i32 s68, s83, 1664525
        s_add_u32 s68, s68, 1013904223
        s_and_b32 s64, s68, 0xff
        s_bfe_u32 s65, s68, 0x70009
        s_lshl_b32 s65, s65, 1
        s_andn2_b32 s66, 1, s68
        s_or_b32 s65, s65, s66
        s_bfe_u32 s66, s68, 0x80010
        s_lshr_b32 s67, s68, 24
        v_mov_b32 v8, s64
        v_mov_b32 v9, s65
        v_mov_b32 v10, s66
        v_mov_b32 v11, s67""")
    def decode(regs, t):
        allr = []
        for r in regs:
            for k in range(4):
                a(f"v_xor_b32 v{r+k}, s{64+k}, v{r+k}"); allr.append(r + k)
        a(f"v_or3_b32 v{t}, v{allr[0]}, v{allr[1]}, v{allr[2]}")
        rest = allr[3:]
        while len(rest) >= 2:
            a(f"v_or3_b32 v{t}, v{t}, v{rest[0]}, v{rest[1]}"); rest = rest[2:]
        if rest: a(f"v_or_b32 v{t}, v{t}, v{rest[0]}")
        a(f"v_and_b32 v{t}, 0xff, v{t}\nv_cmp_ne_u32 vcc, 0, v{t}")
    def poll(loads, regs, t, skip_dry=True):
        L, D = lab("poll"), lab("pdone")
        if skip_dry: a(f"s_cbranch_execz {D}")
        a(f"s_mov_b32 s71, 0\n{L}:")
        for l in loads: a(l)
        a("s_add_u32 s71, s71, 1\ns_waitcnt vmcnt(0)")
        decode(regs, t)
        a(f"s_cmp_gt_u32 s71, {POLL_MAX}\ns_cbranch_scc1 {D}\ns_cbranch_vccnz {L}\n{D}:")
    def encode(r, rnd=True):
        for k in range(4):
            if rnd: a(f"v_add_u32 v{r+k}, 0x80, v{r+k}")
        for k in range(4):
            a(f"v_and_or_b32 v{r+k}, v{r+k}, s69, v{8+k}")
    def fold32(r, t, n=4, op="v_add_f32"):
        for k in range(n): a(f"v_mov_b32 v{t+k}, v{r+k}")
        for k in range(n): a(f"v_permlane32_swap_b32 v{r+k}, v{t+k}")
        for k in range(n): a(f"{op} v{r+k}, v{r+k}, v{t+k}")
    def fold16(r, t, n=4, op="v_add_f32"):
        for k in range(n): a(f"v_mov_b32 v{t+k}, v{r+k}")
        for k in range(n): a(f"v_permlane16_swap_b32 v{r+k}, v{t+k}")
        for k in range(n): a(f"{op} v{r+k}, v{r+k}, v{t+k}")
    DPPM = "row_mask:0xf bank_mask:0xf"
    def rowsum(r):
        for n in (8, 4, 2, 1): a(f"v_add_f32_dpp v{r}, v{r}, v{r} row_ror:{n} {DPPM}")
    def selsetup():
        a("""v_and_b32 v12, 1, v2
        v_cmp_eq_u32 vcc, 1, v12
        v_mov_b32 v13, 0x0c0c0100
        v_mov_b32 v14, 0x01000c0c
        v_cndmask_b32 v13, v13, v14, vcc
        v_mov_b32 v14, 0x0c0c0302
        v_mov_b32 v15, 0x03020c0c
        v_cndmask_b32 v14, v14, v15, vcc
        v_and_b32 v12, 2, v2
        v_cmp_eq_u32 vcc, 2, v12
        v_mov_b32 v15, 0x0c0c0c0c
        v_cndmask_b32 v4, v13, v15, vcc
        v_cndmask_b32 v5, v15, v13, vcc
        v_cndmask_b32 v6, v14, v15, vcc
        v_cndmask_b32 v7, v15, v14, vcc""")
    def gemv(np_, P, Ws, Ds, AB=32):
        def build(m):
            b = AB + 4 * (m % 3)
            for k in range(4): a(f"v_perm_b32 v{b+k}, v{P+m}, v{P+m}, v{4+k}")
        build(0)
        for m in range(np_):
            if m + 1 < np_: build(m + 1)
            b = AB + 4 * (m % 3)
            for W, D in zip(Ws, Ds):
                c = "0" if m == 0 else f"v[{D}:{D+3}]"
                a(f"v_mfma_f32_16x16x32_bf16 v[{D}:{D+3}], v[{b}:{b+3}], v[{W+4*m}:{W+4*m+3}], {c}")
    def silu4(d, s, t):
        for k in range(4): a(f"v_mul_f32 v{t+k}, 0xbfb8aa3b, v{s+k}")
        for k in range(4): a(f"v_exp_f32 v{t+k}, v{t+k}")
        for k in range(4): a(f"v_add_f32 v{t+k}, 1.0, v{t+k}")
        for k in range(4): a(f"v_rcp_f32 v{t+k}, v{t+k}")
        for k in range(4): a(f"v_mul_f32 v{d+k}, v{s+k}, v{t+k}")
    def barrier_nd():
        S = lab("nb")
        a(f"s_waitcnt lgkmcnt(0)\ns_cbranch_execz {S}\ns_barrier\n{S}:")
    def shuffle(src):
        a(f"ds_write_b64 v58, v[{src}:{src+1}]\ns_waitcnt lgkmcnt(0)")
        a("ds_read_b128 v[24:27], v59\nds_read_b128 v[28:31], v59 offset:16\ns_waitcnt lgkmcnt(0)")
    def shufsetup():
        a(f"""s_lshl_b32 s28, s3, 9
        s_add_u32 s28, s28, {SH}
        v_lshlrev_b32 v58, 3, v0
        v_add_u32 v58, s28, v58
        v_bfe_u32 v59, v2, 2, 1
        v_lshlrev_b32 v59, 7, v59
        v_lshl_add_u32 v59, v1, 5, v59
        s_add_u32 s28, s28, 256
        v_add_u32 v59, s28, v59""")
    def ln_block(x, n, t, drysafe=True):
        a(f"v_add_f32 v{t}, v{x}, v{x+1}\nv_add_f32 v{t+1}, v{x+2}, v{x+3}\nv_add_f32 v{t}, v{t}, v{t+1}")
        rowsum(t)
        a(f"v_mul_f32 v{t}, 0x3c800000, v{t}")
        for k in range(4): a(f"v_sub_f32 v{t+2+k}, v{x+k}, v{t}")
        a(f"v_mul_f32 v{t+1}, v{t+2}, v{t+2}")
        for k in range(1, 4): a(f"v_fmac_f32 v{t+1}, v{t+2+k}, v{t+2+k}")
        rowsum(t + 1)
        a(f"""v_and_b32 v{t+2}, 1, v1
        v_lshlrev_b32 v{t+2}, 6, v{t+2}
        s_lshl_b32 s28, s3, 3
        s_add_u32 s28, s28, {ST}
        v_add_u32 v{t+3}, s28, v{t+2}
        ds_write_b64 v{t+3}, v[{t}:{t+1}]
        v_and_b32 v{t+3}, 7, v2
        v_lshl_add_u32 v{t+3}, v{t+3}, 3, v{t+2}""")
        barrier_nd() if drysafe else a('s_waitcnt lgkmcnt(0)\ns_barrier')
        a(f"ds_read_b64 v[{t}:{t+1}], v{t+3} offset:{ST}\ns_waitcnt lgkmcnt(0)")
        red8 = lambda r: [a(f"v_add_f32_dpp v{r}, v{r}, v{r} {m} {DPPM}") for m in ("quad_perm:[1,0,3,2]", "quad_perm:[2,3,0,1]", "row_half_mirror")]
        a(f"v_mov_b32 v{t+2}, v{t}")
        red8(t + 2)
        a(f"v_mul_f32 v{t+2}, 0x3e000000, v{t+2}")
        a(f"v_sub_f32 v{t}, v{t}, v{t+2}\nv_mul_f32 v{t}, v{t}, v{t}\nv_fmac_f32 v{t+1}, 0x42800000, v{t}")
        red8(t + 1)
        a(f"v_mul_f32 v{t+1}, 0x3b000000, v{t+1}")
        round2(t + 2, t + 1, t + 2, t + 1, t)
        a(f"v_add_f32 v{t+1}, 0x3727c5ac, v{t+1}")
        for k in range(4): a(f"v_sub_f32 v{n+k}, v{x+k}, v{t+2}")
        a(f"v_cvt_pk_bf16_f32 v{t+1}, v{t+1}, v{t+1}\nv_and_b32 v{t+1}, s70, v{t+1}\nv_sqrt_f32 v{t+1}, v{t+1}")
        round4(n, n, t + 4)
        a(f"v_cvt_pk_bf16_f32 v{t+1}, v{t+1}, v{t+1}\nv_and_b32 v{t+1}, s70, v{t+1}\nv_rcp_f32 v{t+1}, v{t+1}")
        for k in range(4): a(f"v_mul_f32 v{n+k}, v{n+k}, v{t+1}")
        round4(n, n, t + 4)
    def wloads(reg, n, vo, srdq, sbase, step, steps=None):
        for jj in range(n):
            off = steps[jj] if steps else jj * step
            a(f"s_add_u32 s29, {sbase}, {off}")
            a(f"buffer_load_dwordx2 v[{reg+2*jj}:{reg+2*jj+1}], {vo}, {srdq}, s29 offen {nt}")

    a(f"""s_cmp_ge_u32 s2, 256
    s_cbranch_scc1 L_exit
    s_load_dwordx16 s[36:51], s[0:1], 0
    s_load_dwordx8 s[52:59], s[0:1], 64
    s_load_dwordx4 s[60:63], s[0:1], 96""")
    if stamps:
        for k in range(84, 102): a(f"s_mov_b32 s{k}, 0")
    stamp(0)
    a(f"""v_lshrrev_b32 v1, 6, v0
    v_and_b32 v0, 63, v0
    v_readfirstlane_b32 s3, v1
    v_lshrrev_b32 v1, 4, v0
    v_and_b32 v2, 15, v0
    v_lshlrev_b32 v3, 4, v0
    s_and_b32 s4, s2, 7
    s_lshr_b32 s5, s2, 3
    s_mov_b32 s69, 0xffffff00
    s_mov_b32 s70, 0xffff0000
    s_setprio 2
    v_mov_b32 v12, {CNT}
    v_mov_b32 v13, 0
    ds_write_b32 v12, v13
    s_cmp_lt_u32 s5, 8
    s_cbranch_scc1 L_W
    s_and_b32 s6, s5, 1
    s_sub_u32 s7, s5, 8
    s_lshr_b32 s7, s7, 1
    s_mul_i32 s28, s7, 10
    s_min_u32 s29, s7, 8
    s_add_u32 s28, s28, s29
    s_add_u32 s28, s28, s3
    s_lshl_b32 s28, s28, 13
    s_lshl_b32 s29, s6, 3
    s_add_u32 s29, s29, s4
    s_lshl_b32 s29, s29, 23
    s_add_u32 s28, s28, s29
    s_add_u32 s28, s28, 0x700000
    s_add_u32 s30, s28, 4096
    s_lshl_b32 s31, s3, 13
    s_add_u32 s31, s31, {KT}
    v_lshlrev_b32 v12, 2, v1
    v_xor_b32 v12, v12, v2
    v_lshlrev_b32 v12, 4, v12
    v_lshl_add_u32 v4, v1, 8, v12
    v_xor_b32 v5, 16, v4
    v_xor_b32 v6, 32, v4
    v_xor_b32 v7, 48, v4
    s_lshl_b32 s32, s4, 1
    s_add_u32 s32, s32, s6
    s_lshl_b32 s32, s32, 11
    s_add_u32 s32, s32, {HQ}
    s_waitcnt lgkmcnt(0)
    s_load_dword s83, s[62:63], 0""")
    srd(8, P_K, 0x8000000); srd(12, P_V, 0x8000000); srd(16, P_WS, WS_BYTES)
    a(f"""s_barrier
    s_cmp_lt_u32 s7, 8
    s_cselect_b32 s29, 11, 10
    s_cmp_ge_u32 s3, s29
    s_cbranch_scc1 L_idle
    s_mov_b32 m0, s31""")
    for j in range(4): a(f"buffer_load_dwordx4 v{4+j}, {SA}, s28 offen offset:{j*1024} {nt} lds")
    a("s_add_u32 s29, s31, 4096\ns_mov_b32 m0, s29")
    for j in range(4): a(f"buffer_load_dwordx4 v{4+j}, {SA}, s30 offen offset:{j*1024} {nt} lds")
    qloads = [f"buffer_load_dwordx4 v[144:147], v3, {SW}, s32 offen sc1", f"buffer_load_dwordx4 v[148:151], v3, {SW}, s32 offen offset:1024 sc1"]
    for l in qloads: a(l)
    for j in range(8):
        a(f"buffer_load_dwordx4 v[{32+4*j}:{35+4*j}], v3, {SB}, {'s28' if j < 4 else 's30'} offen offset:{(j&3)*1024} {nt}")
    stamp(1)
    tagsetup()
    a(f"""s_mov_b32 s74, 0x11111111
    s_mov_b32 s75, 0x11111111
    s_mov_b32 s76, 0x22222222
    s_mov_b32 s77, 0x22222222
    s_mov_b32 s78, 0x44444444
    s_mov_b32 s79, 0x44444444
    s_mov_b32 s80, 0x88888888
    s_mov_b32 s81, 0x88888888
    s_mov_b32 s33, 0x05040100
    s_mov_b32 s34, 0x07060302
    v_and_b32 v12, 3, v2
    v_lshrrev_b32 v13, 2, v2
    v_lshl_add_u32 v12, v12, 2, v13
    v_lshlrev_b32 v12, 8, v12
    v_xor_b32 v14, v1, v2
    v_lshl_add_u32 v12, v14, 4, v12
    v_add_u32 v4, s31, v12
    v_xor_b32 v5, 64, v4
    v_xor_b32 v6, 0x80, v4
    v_xor_b32 v7, 0xc0, v4
    s_lshl_b32 s35, s3, 11
    s_add_u32 s35, s35, {OP}
    v_lshlrev_b32 v14, 3, v0
    v_add_u32 v14, s35, v14
    v_lshlrev_b32 v15, 8, v13
    v_lshl_add_u32 v15, v1, 4, v15
    v_add_u32 v15, s35, v15""")
    if dry:
        a("s_cmp_lg_u32 s3, 0\ns_cbranch_scc1 L_att\ns_mov_b64 exec, 0")
    a("L_att:")
    a("s_cbranch_execz L_qok\ns_waitcnt vmcnt(8)")
    stamp(2)
    for t in range(2):
        for i in range(4):
            a(f"ds_read_b128 v[{96+16*t+4*i}:{99+16*t+4*i}], v{4+i} offset:{t*4096}")
    decode([144, 148], 16)
    a("s_cbranch_vccz L_qok")
    poll(qloads, [144, 148], 16, skip_dry=False)
    a("L_qok:")
    stamp(3)
    a(f"""v_perm_b32 v16, v145, v144, s34
    v_perm_b32 v17, v147, v146, s34
    v_perm_b32 v18, v149, v148, s34
    v_perm_b32 v19, v151, v150, s34
    ds_write_b64 v14, v[16:17]
    ds_write_b64 v14, v[18:19] offset:512
    s_waitcnt lgkmcnt(0)""")
    for i in range(4): a(f"ds_read_b128 v[{128+4*i}:{131+4*i}], v15 offset:{64*i}")
    a("s_waitcnt lgkmcnt(0)")
    for i in range(4):
        for t in range(2):
            c = "0" if i == 0 else f"v[{152+4*t}:{155+4*t}]"
            a(f"v_mfma_f32_16x16x32_bf16 v[{152+4*t}:{155+4*t}], v[{96+16*t+4*i}:{99+16*t+4*i}], v[{128+4*i}:{131+4*i}], {c}")
    round4(152, 152, 16); round4(156, 156, 18)
    for k in range(8): a(f"v_mul_f32 v{152+k}, 0x3db504f3, v{152+k}")
    round4(152, 152, 16); round4(156, 156, 18)
    a("""v_max3_f32 v16, v152, v153, v154
    v_max3_f32 v17, v155, v156, v157
    v_max3_f32 v16, v16, v158, v159
    v_max_f32 v16, v16, v17""")
    fold16(16, 17, 1, "v_max_f32"); fold32(16, 17, 1, "v_max_f32")
    for k in range(8): a(f"v_sub_f32 v{152+k}, v{152+k}, v16")
    for k in range(8): a(f"v_mul_f32 v{152+k}, {LOG2E}, v{152+k}")
    for k in range(8): a(f"v_exp_f32 v{152+k}, v{152+k}")
    for k in range(4): a(f"v_cvt_pk_bf16_f32 v{20+k}, v{152+2*k}, v{153+2*k}")
    a("""v_add_f32 v17, v152, v153
    v_add_f32 v18, v154, v155
    v_add_f32 v19, v156, v157
    v_add_f32 v24, v158, v159
    v_add_f32 v17, v17, v18
    v_add_f32 v19, v19, v24
    v_add_f32 v17, v17, v19""")
    fold16(17, 18, 1); fold32(17, 18, 1)
    for s in range(4):
        for k in range(4): a(f"v_cndmask_b32 v{128+4*s+k}, 0, v{20+k}, s[{74+2*s}:{75+2*s}]")
    stamp(4)
    for p in range(4):
        S = lab("vw")
        a(f"s_cbranch_execz {S}\ns_waitcnt vmcnt({6-2*p})\n{S}:")
        for i in range(8):
            a(f"v_perm_b32 v{64+4*i+p}, v{32+4*(2*p+1)+(i>>1)}, v{32+4*(2*p)+(i>>1)}, {'s34' if i & 1 else 's33'}")
    stamp(5)
    for s in range(4):
        for aa in range(2):
            i = 2 * s + aa
            c = "0" if s == 0 else f"v[{152+4*aa}:{155+4*aa}]"
            a(f"v_mfma_f32_16x16x32_bf16 v[{152+4*aa}:{155+4*aa}], v[{64+4*i}:{67+4*i}], v[{128+4*s}:{131+4*s}], {c}")
    a("L_arrive:")
    a(f"""v_add_u32 v18, s35, v3
    v_mul_u32_u24 v19, 48, v13
    s_lshl_b32 s29, s3, 2
    v_add_u32 v20, s29, v19
    ds_write_b32 v20, v16 offset:{ML}
    ds_write_b32 v20, v17 offset:{ML+192}
    ds_write_b128 v18, v[152:155]
    ds_write_b128 v18, v[156:159] offset:1024
    v_mov_b32 v21, {CNT}
    v_mov_b32 v22, 1
    s_waitcnt lgkmcnt(0)
    s_cbranch_execz L_comb
    s_mov_b64 exec, 1
    ds_add_rtn_u32 v21, v21, v22
    s_mov_b64 exec, -1
    s_waitcnt lgkmcnt(0)
    v_readfirstlane_b32 s29, v21
    s_cmp_lg_u32 s29, {NW-1}
    s_cbranch_scc1 L_tail
    L_comb:""")
    for k in range(3): a(f"ds_read_b128 v[{120+4*k}:{123+4*k}], v19 offset:{ML+16*k}")
    for k in range(3): a(f"ds_read_b128 v[{132+4*k}:{135+4*k}], v19 offset:{ML+192+16*k}")
    a(f"v_add_u32 v18, {OP}, v3")
    for w in range(NW):
        for aa in range(2):
            a(f"ds_read_b128 v[{32+8*w+4*aa}:{35+8*w+4*aa}], v18 offset:{w*2048+aa*1024}")
    a(f"""s_mul_i32 s29, s4, 24
    s_mul_i32 s30, s6, 12
    s_add_u32 s29, s29, s30
    s_add_u32 s29, s29, s7
    s_lshl_b32 s30, s29, 11
    s_add_u32 s30, s30, {HA}
    s_lshl_b32 s29, s29, 7
    s_add_u32 s29, s29, {HML}
    v_and_b32 v20, 3, v2
    v_lshl_add_u32 v20, v1, 2, v20
    v_lshl_add_u32 v20, v13, 5, v20
    v_lshlrev_b32 v20, 4, v20
    v_lshlrev_b32 v21, 4, v13
    s_waitcnt lgkmcnt(0)
    v_max3_f32 v144, v120, v121, v122
    v_max3_f32 v145, v123, v124, v125
    v_max3_f32 v146, v126, v127, v128
    v_max3_f32 v144, v144, v129, v130
    v_max3_f32 v144, v144, v145, v146""")
    for w in range(NW): a(f"v_sub_f32 v{120+w}, v{120+w}, v144")
    for w in range(NW): a(f"v_mul_f32 v{120+w}, {LOG2E}, v{120+w}")
    for w in range(NW): a(f"v_exp_f32 v{120+w}, v{120+w}")
    a("v_mul_f32 v145, v120, v132")
    for w in range(1, NW): a(f"v_fmac_f32 v145, v{120+w}, v{132+w}")
    for k in range(8): a(f"v_mul_f32 v{152+k}, v120, v{32+k}")
    for w in range(1, NW):
        for k in range(8): a(f"v_fmac_f32 v{152+k}, v{120+w}, v{32+8*w+k}")
    a("v_mov_b32 v146, 0\nv_mov_b32 v147, 0")
    encode(152); encode(156); encode(144)
    a(f"""s_cbranch_execz L_dry1
    buffer_store_dwordx4 v[152:155], v20, {SW}, s30 offen sc1
    buffer_store_dwordx4 v[156:159], v20, {SW}, s30 offen offset:256 sc1
    s_mov_b64 exec, 0x1111
    buffer_store_dwordx4 v[144:147], v21, {SW}, s29 offen sc1
    s_mov_b64 exec, -1""")
    stamp(6)
    a("s_branch L_tail")
    a("L_dry1:\ns_mov_b64 exec, -1\ns_branch L_att")
    a("L_idle:")
    tagsetup()
    a(f"""v_lshrrev_b32 v13, 2, v2
    s_lshl_b32 s35, s3, 11
    s_add_u32 s35, s35, {OP}
    v_mov_b32 v16, 0xff800000
    v_mov_b32 v17, 0""")
    for k in range(8): a(f"v_mov_b32 v{152+k}, 0")
    a("s_branch L_arrive")

    a(f"""L_tail:
    s_setprio 0
    s_cmp_lt_u32 s7, 8
    s_cbranch_scc1 L_end
    s_cmp_ge_u32 s3, 8
    s_cbranch_scc1 L_end
    s_and_b32 s28, s7, 1
    s_lshl_b32 s28, s28, 1
    s_add_u32 s28, s28, s6
    s_cmp_ge_u32 s7, 10
    s_cbranch_scc1 L_ML
    s_lshl_b32 s5, s28, 3
    s_add_u32 s5, s5, s4
    s_cmp_ge_u32 s5, 28
    s_cbranch_scc1 L_end""")
    srd(8, P_WG, 512 * 3584); srd(12, P_WU, 512 * 3584); srd(20, P_WD, 1792 * 1024); srd(24, P_X, 2048)
    a(f"""v_lshlrev_b32 v12, 3, v2
    v_mul_u32_u24 v13, {16*3584}, v1
    v_add_u32 v13, v13, v12
    v_lshl_add_u32 v14, v1, 14, v12
    v_and_b32 v15, 1, v1
    v_lshl_add_u32 v15, v15, 10, v12
    s_mul_i32 s30, s3, {64*3584}
    s_lshl_b32 s31, s5, 7
    s_add_u32 s30, s30, s31
    s_lshl_b32 s31, s5, 16
    s_lshl_b32 s32, s3, 7
    s_add_u32 s31, s31, s32
    buffer_load_dwordx2 v[56:57], v15, {SD}, s32 offen""")
    for jj in range(16):
        a(f"s_add_u32 s29, s30, {jj*3584}")
        a(f"buffer_load_dwordx2 v[{64+2*jj}:{65+2*jj}], v13, {SA}, s29 offen {nt}")
        a(f"buffer_load_dwordx2 v[{96+2*jj}:{97+2*jj}], v13, {SB}, s29 offen {nt}")
    wloads(128, 16, "v14", SC, "s31", 1024)
    srd(24, P_OUT, 2048)
    selsetup(); shufsetup()
    a(f"""v_and_b32 v60, 31, v0
    v_lshlrev_b32 v60, 4, v60
    s_lshl_b32 s30, s3, 11
    s_add_u32 s30, s30, {HM_L}
    s_lshl_b32 s31, s3, 12
    s_add_u32 s31, s31, {HW}
    s_lshl_b32 s28, s3, 10
    s_add_u32 s28, s28, {RED}
    v_add_u32 v61, s28, v3
    s_mov_b32 s74, 0
    s_mov_b32 s75, -1""")
    if dry: a("s_mov_b64 exec, 0")
    a("L_F:")
    poll([f"buffer_load_dwordx4 v[{r}:{r+3}], v60, {SW}, s30 offen offset:{512*k} sc1" for k, r in enumerate((12, 16, 20, 160))], [12, 16, 20, 160], 32)
    stamp(4)
    unpack4(164, 56)
    for k in range(4): a(f"v_add_f32 v{20+k}, 1.0, v{20+k}")
    round4(20, 20, 32)
    poll([f"buffer_load_dwordx4 v[{32+4*k}:{35+4*k}], v3, {SW}, s31 offen offset:{1024*k} sc1" for k in range(4)], [32, 36, 40, 44], 48)
    stamp(5)
    for k in range(4): a(f"v_add_f32 v{32+k}, v{32+k}, v{36+k}\nv_add_f32 v{40+k}, v{40+k}, v{44+k}")
    for k in range(4): a(f"v_add_f32 v{32+k}, v{32+k}, v{40+k}")
    fold32(32, 36)
    round4(32, 32, 36)
    for k in range(4): a(f"v_mul_f32 v{32+k}, v{12+k}, v{32+k}")
    round4(32, 32, 36)
    for k in range(4): a(f"v_add_f32 v{32+k}, v{164+k}, v{32+k}")
    round4(12, 32, 36)
    ln_block(12, 32, 36)
    for k in range(4): a(f"v_mul_f32 v{32+k}, v{32+k}, v{20+k}")
    round4(32, 32, 36)
    for k in range(4): a(f"v_add_f32 v{32+k}, v{32+k}, v{16+k}")
    a("v_cvt_pk_bf16_f32 v36, v32, v33\nv_cvt_pk_bf16_f32 v37, v34, v35")
    shuffle(36)
    gemv(8, 24, [64, 96], [44, 48])
    for k in range(4): a(f"v_cndmask_b32 v{44+k}, v{44+k}, v{48+k}, s[74:75]")
    a("ds_write_b128 v61, v[44:47]")
    barrier_nd()
    for w in range(8): a(f"ds_read_b128 v[{64+4*w}:{67+4*w}], v3 offset:{RED+1024*w}")
    a("s_waitcnt lgkmcnt(0)")
    for st in (16, 8):
        for k in range(st): a(f"v_add_f32 v{64+k}, v{64+k}, v{64+st+k}")
    for k in range(4): a(f"v_add_f32 v{48+k}, v{64+k}, v{68+k}")
    round4(48, 48, 36)
    silu4(52, 48, 40)
    round4(52, 52, 36)
    for k in range(4): a(f"v_mov_b32 v{40+k}, v{48+k}")
    for k in range(4): a(f"v_permlane32_swap_b32 v{40+k}, v{52+k}")
    for k in range(4): a(f"v_mul_f32 v{40+k}, v{40+k}, v{48+k}")
    a("v_cvt_pk_bf16_f32 v36, v40, v41\nv_cvt_pk_bf16_f32 v37, v42, v43")
    shuffle(36)
    gemv(8, 24, [128], [44])
    a(f"""v_and_b32 v48, 1, v1
    v_mul_u32_u24 v48, {28*256}, v48
    v_lshl_add_u32 v48, v2, 4, v48
    s_mul_i32 s28, s3, {2*28*256}
    s_lshl_b32 s29, s5, 8
    s_add_u32 s28, s28, s29
    s_add_u32 s28, s28, {HF}""")
    encode(44)
    S = lab("fs")
    a(f"""s_cbranch_execz {S}
    s_mov_b32 exec_hi, 0
    buffer_store_dwordx4 v[44:47], v48, {SW}, s28 offen sc1
    s_mov_b64 exec, -1""")
    stamp(6)
    a(f"""s_lshr_b32 s28, s5, 1
    s_cmp_lg_u32 s28, s3
    s_cbranch_scc1 L_end
    {S}:
    s_mul_i32 s28, s5, {28*256}
    s_add_u32 s28, s28, {HF}
    s_add_u32 s29, s28, 4096""")
    poll([f"buffer_load_dwordx4 v[{64+4*k}:{67+4*k}], v3, {SW}, {'s28' if k < 4 else 's29'} offen offset:{1024*(k&3)} sc1" for k in range(7)], [64 + 4 * k for k in range(7)], 32)
    stamp(7)
    for k in range(12): a(f"v_add_f32 v{64+k}, v{64+k}, v{80+k}")
    for k in range(8): a(f"v_add_f32 v{64+k}, v{64+k}, v{72+k}")
    for k in range(4): a(f"v_add_f32 v{40+k}, v{64+k}, v{68+k}")
    fold16(40, 44); fold32(40, 44)
    round4(40, 40, 36)
    for k in range(4): a(f"v_mul_f32 v{40+k}, v{160+k}, v{40+k}")
    round4(40, 40, 36)
    for k in range(4): a(f"v_add_f32 v{40+k}, v{12+k}, v{40+k}")
    a(f"""v_cvt_pk_bf16_f32 v36, v40, v41
    v_cvt_pk_bf16_f32 v37, v42, v43
    v_and_b32 v48, 1, v1
    v_lshlrev_b32 v48, 10, v48
    v_lshl_add_u32 v48, v2, 3, v48
    s_lshl_b32 s28, s3, 7
    s_cbranch_execz L_dry2
    s_and_b32 s29, s5, 1
    s_lshl_b32 s29, s29, 4
    s_lshl_b32 s30, 0xffff, s29
    s_mov_b32 s31, 0
    s_mov_b64 exec, s[30:31]
    buffer_store_dwordx2 v[36:37], v48, {SD}, s28 offen
    s_mov_b64 exec, -1
    s_cmp_lg_u32 s5, 0
    s_cbranch_scc1 L_end
    v_mov_b32 v36, s68
    v_mov_b32 v37, 0
    s_mov_b64 exec, 1
    buffer_store_dword v36, v37, {SW}, 0 offen
    s_mov_b64 exec, -1
    s_branch L_end
    L_dry2:
    s_mov_b64 exec, -1
    s_branch L_F""")

    a("L_ML:")
    srd(8, P_WM, 512 * 6144); srd(20, P_C, 2048)
    a(f"""v_lshlrev_b32 v12, 3, v2
    v_mul_u32_u24 v13, {16*6144}, v1
    v_add_u32 v13, v13, v12
    v_and_b32 v15, 1, v1
    v_lshl_add_u32 v15, v15, 10, v12
    s_lshl_b32 s32, s3, 7
    buffer_load_dwordx2 v[56:57], v15, {SC}, s32 offen
    s_mul_i32 s30, s3, {64*6144}
    s_lshl_b32 s31, s28, 10
    s_add_u32 s30, s30, s31
    s_lshl_b32 s31, s4, 7
    s_add_u32 s30, s30, s31
    s_add_u32 s30, s30, 2048
    s_lshl_b32 s73, s4, 2
    s_add_u32 s73, s73, s28
    s_lshl_b32 s73, s73, 9
    s_add_u32 s73, s73, {HM_L}""")
    wloads(64, 16, "v13", SA, "s30", 6144)
    selsetup(); shufsetup()
    a(f"""v_and_b32 v60, 31, v0
    v_lshlrev_b32 v60, 4, v60
    v_mov_b32 v62, v60
    v_mov_b32 v61, v60
    s_mov_b32 s82, 1
    s_mov_b32 s72, 2
    s_waitcnt vmcnt(16)""")
    unpack4(32, 56)
    silu4(32, 32, 36)
    a("v_cvt_pk_bf16_f32 v56, v32, v33\nv_cvt_pk_bf16_f32 v57, v34, v35\ns_waitcnt vmcnt(0)\ns_branch L_G8")

    a(f"""L_W:
    s_waitcnt lgkmcnt(0)
    s_load_dword s83, s[62:63], 0
    s_barrier
    s_cmp_ge_u32 s3, 8
    s_cbranch_scc1 L_end""")
    srd(8, P_WM, 512 * 6144); srd(12, P_WQ, 512 * 8192); srd(16, P_WS, WS_BYTES); srd(20, P_C, 2048); srd(24, P_X, 2048)
    a(f"""s_and_b32 s6, s2, 15
    s_lshr_b32 s7, s2, 4
    s_lshl_b32 s28, s7, 7
    s_lshl_b32 s29, s3, 4
    s_add_u32 s28, s28, s29
    s_lshl_b32 s30, s28, 1
    v_bfe_u32 v12, v2, 2, 1
    v_lshlrev_b32 v12, 10, v12
    v_lshl_add_u32 v12, v1, 3, v12
    buffer_load_dwordx2 v[52:53], v12, {SC}, s30 offen
    s_mul_i32 s30, s28, 6144
    s_lshl_b32 s31, s6, 7
    s_add_u32 s30, s30, s31
    v_lshlrev_b32 v12, 3, v2
    v_mul_u32_u24 v13, {4*6144}, v1
    v_add_u32 v13, v13, v12""")
    wloads(96, 4, "v13", SA, "s30", 6144)
    a(f"""v_and_b32 v15, 1, v1
    v_lshl_add_u32 v15, v15, 10, v12
    s_lshl_b32 s32, s3, 7
    buffer_load_dwordx2 v[54:55], v15, {SD}, s32 offen
    v_lshl_add_u32 v13, v1, 17, v12
    s_lshl_b32 s30, s3, 19
    s_lshl_b32 s31, s4, 10
    s_add_u32 s30, s30, s31
    s_lshl_b32 s31, s5, 7
    s_add_u32 s30, s30, s31""")
    wloads(64, 16, "v13", SB, "s30", 8192)
    stamp(1)
    selsetup(); shufsetup(); tagsetup()
    a(f"""v_and_b32 v60, 31, v0
    v_lshlrev_b32 v60, 4, v60
    v_mov_b32 v62, v60
    s_lshl_b32 s73, s6, 2
    s_add_u32 s73, s73, s7
    s_lshl_b32 s73, s73, 9
    s_add_u32 s73, s73, {HM_E}
    s_mov_b32 s82, 0
    s_mov_b32 s72, 0
    s_waitcnt vmcnt(21)""")
    unpack4(32, 52)
    silu4(32, 32, 36)
    a("v_cvt_pk_bf16_f32 v24, v32, v33\nv_cvt_pk_bf16_f32 v25, v34, v35\ns_waitcnt vmcnt(17)")
    gemv(2, 24, [96], [44])
    a("s_branch L_RP")

    a("L_Q0:")
    stamp(2)
    a("s_waitcnt vmcnt(16)")
    unpack4(12, 54)
    ln_block(12, 16, 36, False)
    a(f"""v_lshrrev_b32 v61, 5, v0
    v_lshl_add_u32 v61, v61, 14, v60
    s_lshl_b32 s30, s3, 11
    s_add_u32 s30, s30, {HM_E}
    v_and_b32 v62, 1, v1
    v_lshlrev_b32 v62, 11, v62
    v_lshl_add_u32 v62, v2, 4, v62
    s_lshl_b32 s73, s4, 12
    s_lshl_b32 s28, s5, 8
    s_add_u32 s73, s73, s28
    s_add_u32 s73, s73, {HQ}
    s_mov_b32 s82, 1
    s_mov_b32 s72, 1""")
    if dry: a("s_mov_b64 exec, 0")
    a("L_Q:")
    poll([f"buffer_load_dwordx4 v[{96+4*k}:{99+4*k}], v61, {SW}, s30 offen offset:{512*k} sc1" for k in range(4)], [96, 100, 104, 108], 32)
    stamp(3)
    for k in range(4): a(f"v_add_f32 v{96+k}, v{96+k}, v{100+k}\nv_add_f32 v{104+k}, v{104+k}, v{108+k}")
    for k in range(4): a(f"v_add_f32 v{96+k}, v{96+k}, v{104+k}")
    round4(96, 96, 36)
    for k in range(4): a(f"v_mov_b32 v{100+k}, v{96+k}")
    for k in range(4): a(f"v_permlane32_swap_b32 v{100+k}, v{96+k}")
    for k in range(4): a(f"v_add_f32 v{96+k}, 1.0, v{96+k}")
    round4(96, 96, 36)
    for k in range(4): a(f"v_mul_f32 v{96+k}, v{16+k}, v{96+k}")
    round4(96, 96, 36)
    for k in range(4): a(f"v_add_f32 v{96+k}, v{96+k}, v{100+k}")
    a("v_cvt_pk_bf16_f32 v56, v96, v97\nv_cvt_pk_bf16_f32 v57, v98, v99")
    a("L_G8:")
    shuffle(56)
    gemv(8, 24, [64], [44])
    a("s_cbranch_execnz L_RP\ns_mov_b64 exec, -1\ns_branch L_Q")
    a(f"""L_RP:
    s_lshl_b32 s28, s72, 12
    s_add_u32 s28, s28, {RED}
    s_lshl_b32 s29, s3, 9
    s_add_u32 s29, s29, s28
    v_add_u32 v48, s29, v60
    v_lshrrev_b32 v49, 5, v0
    v_lshl_add_u32 v49, v49, 11, v60
    v_add_u32 v49, s28, v49
    ds_write_b128 v48, v[44:47]
    s_waitcnt lgkmcnt(0)
    s_barrier
    s_cmp_lg_u32 s3, 0
    s_cbranch_scc1 L_RPd""")
    for k in range(4): a(f"ds_read_b128 v[{32+4*k}:{35+4*k}], v49 offset:{512*k}")
    a("s_waitcnt lgkmcnt(0)")
    for k in range(4): a(f"v_add_f32 v{32+k}, v{32+k}, v{36+k}\nv_add_f32 v{40+k}, v{40+k}, v{44+k}")
    for k in range(4): a(f"v_add_f32 v{32+k}, v{32+k}, v{40+k}")
    fold32(32, 36)
    a("s_cmp_eq_u32 s82, 0\ns_cbranch_scc1 L_RPn")
    round4(32, 32, 36)
    a("L_RPn:")
    encode(32)
    a(f"""s_mov_b32 exec_hi, 0
    buffer_store_dwordx4 v[32:35], v62, {SW}, s73 offen sc1
    s_mov_b64 exec, -1
    L_RPd:
    s_cmp_eq_u32 s72, 0
    s_cbranch_scc1 L_Q0
    s_cmp_eq_u32 s72, 2
    s_cbranch_scc1 L_end""")
    stamp(4)
    srd(8, P_WO, 4096 * 1024)
    a(f"""v_lshlrev_b32 v12, 3, v2
    v_lshl_add_u32 v13, v1, 15, v12
    s_lshl_b32 s30, s4, 9
    s_lshr_b32 s28, s3, 1
    s_lshl_b32 s29, s28, 7
    s_add_u32 s30, s30, s29
    s_and_b32 s29, s3, 1
    s_add_u32 s30, s30, s29
    s_lshl_b32 s30, s30, 10
    s_lshl_b32 s29, s5, 7
    s_add_u32 s30, s30, s29""")
    wloads(64, 16, "v13", SA, "s30", 0, steps=[(8 * (jj & 3) + 2 * (jj >> 2)) * 1024 for jj in range(16)])
    a(f"""v_lshlrev_b32 v61, 11, v1
    v_lshl_add_u32 v61, v2, 4, v61
    s_mul_i32 s30, s4, {24*2048}
    s_lshl_b32 s29, s3, 8
    s_add_u32 s30, s30, s29
    s_add_u32 s30, s30, {HA}
    v_and_b32 v12, 3, v2
    v_min_u32 v12, 2, v12
    v_bfe_u32 v13, v2, 2, 1
    v_mul_u32_u24 v13, 12, v13
    v_lshl_add_u32 v13, v12, 2, v13
    v_add_u32 v13, v13, v1
    v_lshlrev_b32 v63, 7, v13
    s_mul_i32 s31, s4, {24*128}
    s_lshl_b32 s29, s28, 4
    s_add_u32 s31, s31, s29
    s_add_u32 s31, s31, {HML}
    s_mov_b32 s74, 0x77777777
    s_mov_b32 s75, 0x77777777
    v_mov_b32 v62, v60
    s_lshl_b32 s73, s5, 3
    s_add_u32 s73, s73, s4
    s_lshl_b32 s73, s73, 9
    s_add_u32 s73, s73, {HW}
    s_mov_b32 s82, 0
    s_mov_b32 s72, 2""")
    for j in range(1, 6): a(f"s_add_u32 s{75+j}, s30, {j*8192}")
    if dry: a("s_mov_b64 exec, 0")
    a("L_WO:")
    poll([f"buffer_load_dwordx4 v[120:123], v63, {SW}, s31 offen sc1"] +
         [f"buffer_load_dwordx4 v[{96+4*j}:{99+4*j}], v61, {SW}, {'s30' if j == 0 else 's%d' % (75+j)} offen sc1" for j in range(6)],
         [96 + 4 * j for j in range(7)], 32)
    stamp(5)
    a(f"""v_max_f32_dpp v32, v120, v120 quad_perm:[1,0,3,2] {DPPM}
    v_max_f32_dpp v32, v32, v32 quad_perm:[2,3,0,1] {DPPM}""")
    fold16(32, 33, 1, "v_max_f32"); fold32(32, 33, 1, "v_max_f32")
    a(f"""v_sub_f32 v32, v120, v32
    v_mul_f32 v32, {LOG2E}, v32
    v_exp_f32 v32, v32
    v_cndmask_b32 v121, 0, v121, s[74:75]
    v_mul_f32 v33, v32, v121
    v_add_f32_dpp v33, v33, v33 quad_perm:[1,0,3,2] {DPPM}
    v_add_f32_dpp v33, v33, v33 quad_perm:[2,3,0,1] {DPPM}""")
    fold16(33, 34, 1); fold32(33, 34, 1)
    a("v_rcp_f32 v33, v33\nv_mul_f32 v32, v32, v33")
    for b in range(2):
        for jj in range(3):
            for k in range(4):
                op = "v_mul_f32_dpp" if jj == 0 else "v_fmac_f32_dpp"
                a(f"{op} v{36+4*b+k}, v32, v{96+4*(3*b+jj)+k} row_newbcast:{4*b+jj} {DPPM}")
    for k in range(4): a(f"v_permlane16_swap_b32 v{36+k}, v{40+k}")
    for k in range(4): a(f"v_add_f32 v{36+k}, v{36+k}, v{40+k}")
    fold32(36, 40)
    a("""v_cvt_pk_bf16_f32 v56, v36, v37
    v_cvt_pk_bf16_f32 v57, v38, v39
    s_cbranch_execnz L_G8
    s_mov_b64 exec, -1
    s_branch L_WO""")

    a("L_end:")
    if stamps:
        stamp(8)
        a(f"""s_waitcnt lgkmcnt(0)
        s_lshl_b32 s28, s2, 4
        s_add_u32 s28, s28, s3
        s_lshl_b32 s28, s28, 6
        s_add_u32 s28, s28, {STAMP}
        v_mov_b32 v37, s28
        s_mov_b64 exec, 1""")
        for k in range(9):
            a(f"v_mov_b32 v36, s{84+2*k}\nglobal_store_dword v37, v36, s[62:63] offset:{4*k}")
    a("L_exit:\ns_endpgm")

    body = pad(o)
    out = [HEADER.rstrip("\n"),
           "; Fused persistent kernel: 256 workgroups (one per CU), roles by workgroup id, tagged 16-byte hand-offs through d_ws.",
           f"; @launch grid=(256,1,1) block=({NW*64},1,1) lds={LDS_BYTES}",
           '.amdgcn_target "amdgcn-amd-amdhsa--gfx950"', ".text", f".globl {NAME}_kernel", ".p2align 8",
           f".type {NAME}_kernel,@function", f"{NAME}_kernel:"]
    out += [("" if l.endswith(":") else "    ") + l for l in body]
    out += ['.section .rodata,"a"', ".p2align 6", f".amdhsa_kernel {NAME}_kernel",
            "  .amdhsa_next_free_vgpr 168", "  .amdhsa_next_free_sgpr 102", "  .amdhsa_accum_offset 168",
            "  .amdhsa_group_segment_fixed_size 0", "  .amdhsa_kernarg_size 112", "  .amdhsa_user_sgpr_count 2",
            "  .amdhsa_user_sgpr_kernarg_segment_ptr 1", "  .amdhsa_system_sgpr_workgroup_id_x 1",
            "  .amdhsa_float_denorm_mode_32 3", ".end_amdhsa_kernel"]
    return "\n".join(out) + "\n"

if __name__ == "__main__":
    import argparse
    ap = argparse.ArgumentParser()
    ap.add_argument("-o", default="cdna_kernels/" + NAME + ".s")
    ap.add_argument("--stamps", action="store_true")
    ap.add_argument("--nt", default="nt")
    ap.add_argument("--nodry", action="store_true")
    args = ap.parse_args()
    open(args.o, "w").write(gen(stamps=args.stamps, nt=args.nt, dry=not args.nodry))
```

```python
import sys
sys.path.insert(0, "gen")
from asmlib import pad

NAME = "adaLN_cond__sliding_block_cached__swiglu_ffn__decode"
HEADER = open("cdna_kernels/" + NAME + ".s.ref").read().split("; Override launch")[0]

HG = 0x38000
HM_E, HQ, HML, HA, HW, HM_L, HF, STAMP = 0x10000, 0x20000, 0x30000, 0x40000, 0xB0000, 0xC0000, 0xD0000, 0x200000
WS_BYTES = 0x400000
NW = 12
MX, LS, FLG, ST = 0, 192, 384, 512
KRDY, QRDY, FL1, TOK = 48, 52, 64, 384
QL = 1024
SH = 1024
RED = 6144
KT = RED + 3 * 8192
LDS_BYTES = KT + 11 * 8192
assert KT % 256 == 0
LOG2E = "0x3fb8aa3b"
POLL_MAX = 1 << 16
LOC = 0x100000
DPPM = "row_mask:0xf bank_mask:0xf"

def gen(stamps=False, nt="nt", dry=True, win1=14, t1=3, win2=28, vd=3, vx=4, pfq=True, dual=True, nq=2, late=False, thr1=24, thr2=24, pfl='', pfo=True, fearly=True, gm=63, pq='', po='', qfirst=False):
    secs = {}
    cur = [None]
    def sec(n):
        secs[n] = []; cur[0] = secs[n]
    def a(s):
        for l in s.strip().split("\n"):
            cur[0].append(l.strip())
    uid = [0]
    def lab(p):
        uid[0] += 1
        return f"L_{p}{uid[0]}"
    def stamp(k):
        if stamps: a(f"s_memrealtime s[{84+2*k}:{85+2*k}]")
    def srd(q, ptr, size):
        a(f"s_mov_b32 s{q}, s{ptr}\ns_mov_b32 s{q+1}, s{ptr+1}\ns_mov_b32 s{q+2}, {size:#x}\ns_mov_b32 s{q+3}, 0x00020000")
    P_X, P_K, P_V, P_WQ, P_WO, P_WG, P_WU, P_WD, P_C, P_WM, P_OUT, P_WS = 36, 38, 40, 42, 44, 48, 50, 52, 54, 56, 58, 62
    SA, SB, SW, SC, SD = "s[8:11]", "s[12:15]", "s[16:19]", "s[20:23]", "s[24:27]"
    def pr(r): return f"v[{r}:{r+1}]"
    def pkadd(d, x, y, mod=""): a(f"v_pk_add_f32 {pr(d)}, {pr(x)}, {pr(y)} {mod}")
    def pkmul(d, x, y, mod=""): a(f"v_pk_mul_f32 {pr(d)}, {pr(x)}, {pr(y)} {mod}")
    def add4(d, x, y): pkadd(d, x, y); pkadd(d + 2, x + 2, y + 2)
    def round2(d, s, t):
        a(f"v_cvt_pk_bf16_f32 v{t}, v{s}, v{s+1}\nv_lshlrev_b32 v{d}, 16, v{t}\nv_and_b32 v{d+1}, s70, v{t}")
    def round4(d, s, t):
        a(f"v_cvt_pk_bf16_f32 v{t}, v{s}, v{s+1}\nv_cvt_pk_bf16_f32 v{t+1}, v{s+2}, v{s+3}")
        a(f"v_lshlrev_b32 v{d}, 16, v{t}\nv_and_b32 v{d+1}, s70, v{t}\nv_lshlrev_b32 v{d+2}, 16, v{t+1}\nv_and_b32 v{d+3}, s70, v{t+1}")
    def unpack4(d, s):
        a(f"v_lshlrev_b32 v{d}, 16, v{s}\nv_and_b32 v{d+1}, s70, v{s}\nv_lshlrev_b32 v{d+2}, 16, v{s+1}\nv_and_b32 v{d+3}, s70, v{s+1}")
    def unpack2(d, s):
        a(f"v_lshlrev_b32 v{d}, 16, v{s}\nv_and_b32 v{d+1}, s70, v{s}")
    def tagsetup():
        a("""s_waitcnt lgkmcnt(0)
        s_mul_i32 s68, s83, 1664525
        s_add_u32 s68, s68, 1013904223
        s_and_b32 s64, s68, 0xff
        s_bfe_u32 s65, s68, 0x70009
        s_lshl_b32 s65, s65, 1
        s_andn2_b32 s66, 1, s68
        s_or_b32 s65, s65, s66
        s_bfe_u32 s66, s68, 0x80010
        s_lshr_b32 s67, s68, 24
        v_mov_b32 v8, s64
        v_mov_b32 v9, s65
        v_mov_b32 v10, s66
        v_mov_b32 v11, s67""")
    def decode(regs, t):
        allr = []
        for r in regs:
            for k in range(4):
                a(f"v_xor_b32 v{r+k}, s{64+k}, v{r+k}"); allr.append(r + k)
        a(f"v_or3_b32 v{t}, v{allr[0]}, v{allr[1]}, v{allr[2]}")
        rest = allr[3:]
        while len(rest) >= 2:
            a(f"v_or3_b32 v{t}, v{t}, v{rest[0]}, v{rest[1]}"); rest = rest[2:]
        if rest: a(f"v_or_b32 v{t}, v{t}, v{rest[0]}")
        a(f"v_and_b32 v{t}, 0xff, v{t}\nv_cmp_ne_u32 vcc, 0, v{t}")
    def poll(loads, regs, t, two=None, pre=None):
        L, D, X = lab("poll"), lab("pdone"), lab("pdec")
        if two: a(f"v_add_u32 v{two[0]}, {LOC if dual else 0}, v{two[1]}")
        a(f"s_mov_b32 s71, {POLL_MAX-1}\ns_cbranch_execz {X}")
        if pre:
            W = lab("pw")
            for l in loads: a(l)
            pre()
            a(f"s_branch {W}")
        a(f"{L}:")
        if two and dual: a(f"s_and_b32 s47, s71, {gm}\ns_cselect_b32 s47, {LOC}, 0\nv_add_u32 v{two[0]}, s47, v{two[1]}")
        for l in loads: a(l)
        a(f"s_sub_u32 s71, s71, 1\ns_cbranch_scc1 {D}")
        if pre: a(f"{W}:")
        a(f"s_waitcnt vmcnt(0)\n{X}:")
        decode(regs, t)
        a(f"s_cbranch_vccnz {L}\n{D}:")
    def encode(r, rnd=True):
        for k in range(4):
            if rnd: a(f"v_add_u32 v{r+k}, 0x80, v{r+k}")
        for k in range(4):
            a(f"v_and_or_b32 v{r+k}, v{r+k}, s69, v{8+k}")
    def fold(kind, r, t, n=4, op="v_add_f32"):
        for k in range(n): a(f"v_mov_b32 v{t+k}, v{r+k}")
        for k in range(n): a(f"v_permlane{kind}_swap_b32 v{r+k}, v{t+k}")
        if n == 4 and op == "v_add_f32": add4(r, r, t)
        else:
            for k in range(n): a(f"{op} v{r+k}, v{r+k}, v{t+k}")
    def halve32(r):
        a(f"v_permlane32_swap_b32 v{r}, v{r+2}\nv_permlane32_swap_b32 v{r+1}, v{r+3}")
        pkadd(r, r, r + 2)
    def selsetup():
        a("""v_and_b32 v12, 1, v2
        v_cmp_eq_u32 vcc, 1, v12
        v_mov_b32 v13, 0x0c0c0100
        v_mov_b32 v14, 0x01000c0c
        v_cndmask_b32 v13, v13, v14, vcc
        v_mov_b32 v14, 0x0c0c0302
        v_mov_b32 v15, 0x03020c0c
        v_cndmask_b32 v14, v14, v15, vcc
        v_and_b32 v12, 2, v2
        v_cmp_eq_u32 vcc, 2, v12
        v_mov_b32 v15, 0x0c0c0c0c
        v_cndmask_b32 v4, v13, v15, vcc
        v_cndmask_b32 v5, v15, v13, vcc
        v_cndmask_b32 v6, v14, v15, vcc
        v_cndmask_b32 v7, v15, v14, vcc""")
    def gemv(np_, P, Ws, Ds, AB=32, stride=4, waits=None, first=True):
        def build(m):
            b = AB + 4 * (m % 3)
            for k in range(4): a(f"v_perm_b32 v{b+k}, v{P+m}, v{P+m}, v{4+k}")
        build(0)
        for m in range(np_):
            if m + 1 < np_: build(m + 1)
            b = AB + 4 * (m % 3)
            if waits: a(f"s_waitcnt vmcnt({waits[m]})")
            for W, D in zip(Ws, Ds):
                c = "0" if (m == 0 and first) else f"v[{D}:{D+3}]"
                a(f"v_mfma_f32_16x16x32_bf16 v[{D}:{D+3}], v[{b}:{b+3}], v[{W+stride*m}:{W+stride*m+3}], {c}")
    def silu(n, d, s, t):
        for k in range(n): a(f"v_mul_f32 v{t+k}, 0xbfb8aa3b, v{s+k}")
        for k in range(n): a(f"v_exp_f32 v{t+k}, v{t+k}")
        for k in range(n): a(f"v_add_f32 v{t+k}, 1.0, v{t+k}")
        for k in range(n): a(f"v_rcp_f32 v{t+k}, v{t+k}")
        for k in range(n): a(f"v_mul_f32 v{d+k}, v{s+k}, v{t+k}")
    def barrier_nd():
        S = lab("nb")
        a(f"s_waitcnt lgkmcnt(0)\ns_cbranch_execz {S}\ns_barrier\n{S}:")
    def shuffle(src, wa=58):
        a(f"ds_write_b32 v{wa}, v{src}\nds_read_b128 v[24:27], v59\nds_read_b128 v[28:31], v59 offset:16\ns_waitcnt lgkmcnt(0)")
    def shufsetup():
        a(f"""s_lshl_b32 s28, s3, 9
        s_add_u32 s28, s28, {SH}
        v_and_b32 v58, 31, v0
        v_lshlrev_b32 v58, 3, v58
        v_lshrrev_b32 v59, 5, v0
        v_lshl_add_u32 v58, v59, 2, v58
        v_add_u32 v56, {ST}, v58
        v_and_b32 v56, -8, v56
        v_add_u32 v58, s28, v58
        v_and_b32 v57, 1, v1
        v_lshlrev_b32 v57, 7, v57
        v_lshl_add_u32 v57, v59, 3, v57
        s_lshl_b32 s29, s3, 4
        s_add_u32 s29, s29, {ST}
        v_add_u32 v57, s29, v57
        v_bfe_u32 v59, v2, 2, 1
        v_lshlrev_b32 v59, 7, v59
        v_lshl_add_u32 v59, v1, 5, v59
        v_add_u32 v59, s28, v59""")
    NEGB = "op_sel_hi:[1,0] neg_lo:[0,1] neg_hi:[0,1]"
    def ln2(x, n, t, drysafe=True):
        a(f"v_mov_b32_dpp v{t}, v{x} row_newbcast:0 {DPPM}")
        pkadd(t + 2, x, t, NEGB)
        a(f"v_add_f32 v{t+4}, v{t+2}, v{t+3}\nv_mul_f32 v{t+5}, v{t+2}, v{t+2}\nv_fmac_f32 v{t+5}, v{t+3}, v{t+3}")
        for k in (8, 4, 2, 1):
            a(f"v_add_f32_dpp v{t+4}, v{t+4}, v{t+4} row_ror:{k} {DPPM}\nv_add_f32_dpp v{t+5}, v{t+5}, v{t+5} row_ror:{k} {DPPM}")
        a(f"""v_fmamk_f32 v{t}, v{t+4}, 0x3d000000, v{t}
        v_mul_f32 v{t+4}, v{t+4}, v{t+4}
        v_fmamk_f32 v{t+1}, v{t+4}, 0xbd000000, v{t+5}
        ds_write_b64 v57, {pr(t)}""")
        barrier_nd() if drysafe else a("s_waitcnt lgkmcnt(0)\ns_barrier")
        a(f"""ds_read_b64 {pr(t)}, v56
        s_waitcnt lgkmcnt(0)
        v_mov_b32_dpp v{t+2}, v{t} row_newbcast:0 {DPPM}
        v_sub_f32 v{t+4}, v{t}, v{t+2}
        v_mul_f32 v{t+3}, v{t+4}, v{t+4}
        v_fmamk_f32 v{t+5}, v{t+3}, 0x42000000, v{t+1}""")
        for k in (8, 4, 2, 1):
            a(f"v_add_f32_dpp v{t+4}, v{t+4}, v{t+4} row_ror:{k} {DPPM}\nv_add_f32_dpp v{t+5}, v{t+5}, v{t+5} row_ror:{k} {DPPM}")
        a(f"""v_fmamk_f32 v{t}, v{t+4}, 0x3d800000, v{t+2}
        v_mul_f32 v{t+4}, v{t+4}, v{t+4}
        v_fmamk_f32 v{t+1}, v{t+4}, 0xc0000000, v{t+5}
        v_mul_f32 v{t+1}, 0x3b000000, v{t+1}
        v_max_f32 v{t+1}, 0, v{t+1}""")
        round2(t, t, t + 2)
        a(f"v_add_f32 v{t+2}, 0x3727c5ac, v{t+1}")
        pkadd(n, x, t, NEGB)
        a(f"v_cvt_pk_bf16_f32 v{t+2}, v{t+2}, v{t+2}\nv_cvt_pk_bf16_f32 v{t+3}, v{n}, v{n+1}\nv_and_b32 v{t+2}, s70, v{t+2}\nv_sqrt_f32 v{t+2}, v{t+2}")
        unpack2(n, t + 3)
        a(f"v_cvt_pk_bf16_f32 v{t+2}, v{t+2}, v{t+2}\nv_and_b32 v{t+2}, s70, v{t+2}\nv_rcp_f32 v{t+2}, v{t+2}")
        pkmul(n, n, t + 2, "op_sel_hi:[1,0]")
        round2(n, n, t + 3)
    def wloads(reg, n, vo, srdq, sbase, steps, w=4):
        for m in range(n):
            a(f"s_add_u32 s29, {sbase}, {steps[m]}")
            a(f"buffer_load_dwordx{w} v[{reg+w*m}:{reg+w*m+w-1}], {vo}, {srdq}, s29 offen {nt}")
    def fix64(base, t, after=None):
        for m in range(8):
            if after is not None: a(f"s_waitcnt vmcnt({after + 7 - m})")
            r = base + 4 * m
            a(f"v_mov_b32 v{t}, v{r}\nv_mov_b32 v{t+1}, v{r+1}")
            a(f"v_mov_b32_dpp v{r}, v{r+2} row_ror:8 row_mask:0xf bank_mask:0xc\nv_mov_b32_dpp v{r+1}, v{r+3} row_ror:8 row_mask:0xf bank_mask:0xc")
            a(f"v_mov_b32_dpp v{r+2}, v{t} row_ror:8 row_mask:0xf bank_mask:0x3\nv_mov_b32_dpp v{r+3}, v{t+1} row_ror:8 row_mask:0xf bank_mask:0x3")
    def fix128(base):
        for m in range(8):
            r = base + 8 * m
            a(f"v_swap_b32 v{r+2}, v{r+4}\nv_swap_b32 v{r+3}, v{r+5}")
    def vo64(dst, rowbytes, t):
        a(f"""v_lshrrev_b32 v{t}, 3, v2
        v_lshl_add_u32 v{t}, v1, 4, v{t}
        v_mul_u32_u24 v{t}, {rowbytes}, v{t}
        v_and_b32 v{dst}, 7, v2
        v_lshl_add_u32 v{dst}, v{dst}, 4, v{t}""")

    sec('entry')
    a(f"""s_cmp_ge_u32 s2, 256
    s_cbranch_scc1 L_exit
    s_load_dwordx16 s[36:51], s[0:1], 0
    s_load_dwordx8 s[52:59], s[0:1], 64
    s_load_dwordx4 s[60:63], s[0:1], 96""")
    if stamps:
        for k in range(84, 102): a(f"s_mov_b32 s{k}, 0")
    stamp(0)
    a(f"""v_lshrrev_b32 v1, 6, v0
    v_and_b32 v0, 63, v0
    v_readfirstlane_b32 s3, v1
    v_lshrrev_b32 v1, 4, v0
    v_and_b32 v2, 15, v0
    v_lshlrev_b32 v3, 4, v0
    s_and_b32 s4, s2, 7
    s_lshr_b32 s5, s2, 3
    s_mov_b32 s69, 0xffffff00
    s_mov_b32 s70, 0xffff0000
    s_cmp_lg_u32 s3, 2
    s_cbranch_scc1 L_nopf
    s_getpc_b64 s[28:29]
    L_pc:
    s_min_u32 s30, s5, (L_exit-L_pc)/1024-1
    s_lshl_b32 s30, s30, 10
    s_add_u32 s30, s30, (L_exit-L_pc)&0x3f0
    v_add_u32 v12, s30, v3
    global_load_dwordx4 v[160:163], v12, s[28:29]
    L_nopf:
    s_cmp_lt_u32 s5, 8
    s_cbranch_scc1 L_W
    s_and_b32 s6, s5, 1
    s_sub_u32 s7, s5, 8
    s_lshr_b32 s7, s7, 1
    s_mul_i32 s28, s7, 10
    s_min_u32 s29, s7, 8
    s_add_u32 s28, s28, s29
    s_lshl_b32 s28, s28, 13
    s_lshl_b32 s29, s6, 3
    s_add_u32 s29, s29, s4
    s_lshl_b32 s29, s29, 23
    s_add_u32 s28, s28, s29
    s_add_u32 s28, s28, 0x700000
    s_cmp_lt_u32 s7, 8
    s_cselect_b32 s35, 11, 10
    s_cmp_gt_u32 s3, 1
    s_cbranch_scc1 L_T
    s_cmp_eq_u32 s3, 1
    s_cbranch_scc1 L_M
    v_lshlrev_b32 v12, 2, v1
    v_xor_b32 v12, v12, v2
    v_lshlrev_b32 v12, 4, v12
    v_lshl_add_u32 v4, v1, 8, v12
    v_xor_b32 v5, 16, v4
    v_xor_b32 v6, 32, v4
    v_xor_b32 v7, 48, v4
    s_mov_b32 s31, {KT}
    s_mov_b32 s32, 3
    s_mov_b32 s30, {2*t1-3}
    s_lshl_b32 s33, s35, 1
    s_sub_u32 s33, s33, {2*t1}
    s_setprio 3
    s_waitcnt lgkmcnt(0)
    s_load_dword s83, s[62:63], 0""")
    if stamps: a("s_mov_b32 s46, s3")
    srd(8, P_K, 0x8000000)
    if pfq:
        srd(12, P_WQ, 512 * 8192)
        a(f"""s_cmp_eq_u32 s35, 10
        s_cbranch_scc1 L_k0
        s_sub_u32 s29, s5, 8
        s_lshl_b32 s29, s29, 18
        s_lshl_b32 s34, s4, 10
        s_add_u32 s29, s29, s34
        s_mov_b32 m0, {RED+8192}
        s_mov_b32 s34, 16
        L_pq:
        buffer_load_dwordx4 v3, {SB}, s29 offen {pq} lds
        s_add_u32 s29, s29, 8192
        s_sub_u32 s34, s34, 1
        buffer_load_dwordx4 v3, {SB}, s29 offen {pq} lds
        s_add_u32 s29, s29, 8192
        s_cmp_lg_u32 s34, 0
        s_cbranch_scc1 L_pq""")
    for nm, cnt, win in (("L_k0", "s32", 63), ("L_k1", "s30", win1), ("L_k2", "s33", win2)):
        a(f"{nm}:\ns_mov_b32 m0, s31\ns_add_u32 s31, s31, 4096")
        for j in range(4):
            a(f"buffer_load_dwordx4 v{4+j}, {SA}, s28 offen offset:{j*1024} {nt} lds")
            if win < 63 and j & 1: a(f"s_waitcnt vmcnt({win-2})")
        a(f"s_add_u32 s28, s28, 4096\ns_sub_u32 {cnt}, {cnt}, 1\ns_cmp_lg_u32 {cnt}, 0\ns_cbranch_scc1 {nm}")
        if nm == "L_k0": a("s_barrier")
    if pfo:
        srd(12, P_WO, 4096 * 1024)
        a(f"""s_sub_u32 s29, s5, 8
        s_mul_i32 s29, s29, {22*1024}
        s_min_u32 s29, s29, {(512-24)*1024}
        s_lshl_b32 s30, s4, 19
        s_add_u32 s29, s29, s30
        v_lshlrev_b32 v27, 7, v0""")
        for k in range(3): a(f"s_waitcnt vmcnt({max(0, win2 - 8*(k+1)) + k})\nbuffer_load_dword v16, v27, {SB}, s29 offen {po}\ns_add_u32 s29, s29, 8192")
    a(f"v_mov_b32 v30, {FLG}")
    for d in range(vd if not pfo else 0):
        if d and win2 - 8 * d > 0: a(f"s_waitcnt vmcnt({min(win2, 45) - 8*d})")
        a(f"ds_write_b32 v30, v30 offset:{TOK+4*d}")
    for d in range(vd if pfo else 0):
        a(f"s_waitcnt vmcnt({max(0, 3 - d)})\nds_write_b32 v30, v30 offset:{TOK+4*d}")
    a("s_branch L_H0")
    sec('H')
    a("L_H0:")
    stamp(1)
    srd(16, P_WS, WS_BYTES)
    tagsetup()
    a(f"""s_mov_b32 s34, 0x07060302
    v_and_b32 v12, 3, v2
    v_lshrrev_b32 v13, 2, v2
    v_lshlrev_b32 v14, 3, v0
    v_mul_u32_u24 v25, 48, v13
    v_lshl_add_u32 v27, v1, 2, v12
    v_lshl_add_u32 v27, v13, 5, v27
    v_lshlrev_b32 v27, 4, v27
    v_lshlrev_b32 v28, 4, v13
    v_min_u32 v26, 10, v0
    v_lshlrev_b32 v26, 2, v26
    v_add_u32 v29, {KT}, v3
    v_add_u32 v31, {KT+7*8192}, v3
    v_mov_b32 v22, {LOG2E}
    s_mul_i32 s72, s4, 24
    s_mul_i32 s73, s6, 12
    s_add_u32 s72, s72, s73
    s_add_u32 s72, s72, s7
    s_lshl_b32 s73, s72, 11
    s_add_u32 s73, s73, {HA}
    s_lshl_b32 s72, s72, 7
    s_add_u32 s72, s72, {HML}
    s_add_u32 s74, s72, {LOC}
    s_add_u32 s75, s73, {LOC}""")
    if dry: a("s_mov_b64 exec, 0")
    a(f"L_H:\ns_cbranch_execz L_H1\ns_waitcnt vmcnt(0)\nds_write_b32 v30, v30 offset:{KRDY}\nL_H1:")
    a(f"""L_f1:
    ds_read_b32 v16, v26 offset:{FLG+FL1}""")
    for k in range(3): a(f"ds_read_b128 v[{32+4*k}:{35+4*k}], v25 offset:{MX+16*k}")
    for k in range(3): a(f"ds_read_b128 v[{88+4*k}:{91+4*k}], v25 offset:{LS+16*k}")
    a("""s_waitcnt lgkmcnt(0)
    v_cmp_eq_u32 vcc, 0, v16
    s_cbranch_vccz L_f1d
    s_sleep 1
    s_branch L_f1
    L_f1d:""")
    stamp(3)
    a("""v_max3_f32 v16, v32, v33, v34
    v_max3_f32 v17, v35, v36, v37
    v_max3_f32 v18, v38, v39, v40
    v_max3_f32 v16, v16, v41, v42
    v_max3_f32 v16, v16, v17, v18""")
    for k in range(6): pkadd(32 + 2 * k, 32 + 2 * k, 16, NEGB)
    for k in range(6): pkmul(32 + 2 * k, 32 + 2 * k, 22, "op_sel_hi:[1,0]")
    for k in range(11): a(f"v_exp_f32 v{32+k}, v{32+k}")
    pkmul(18, 32, 88)
    for k in range(1, 5): a(f"v_pk_fma_f32 v[18:19], {pr(32+2*k)}, {pr(88+2*k)}, v[18:19]")
    a("""v_add_f32 v17, v18, v19
    v_fmac_f32 v17, v42, v98
    v_mov_b32 v18, 0
    v_mov_b32 v19, 0""")
    encode(16)
    a(f"""s_cbranch_execz L_col
    s_mov_b64 exec, 0x1111""")
    if dual: a(f"buffer_store_dwordx4 v[16:19], v28, {SW}, s74 offen")
    a(f"""buffer_store_dwordx4 v[16:19], v28, {SW}, s72 offen sc1
    s_mov_b64 exec, -1""")
    stamp(4)
    a("L_col:")
    if stamps: a("s_waitcnt lgkmcnt(0)")
    def colrd(t):
        r = 64 + 12 * (t & 1)
        base, off = ("v29", t * 8192) if t < 7 else ("v31", (t - 7) * 8192)
        a(f"ds_read_b32 v{r+8}, v30 offset:{4*t}\nds_read_b128 v[{r}:{r+3}], {base} offset:{off}\nds_read_b128 v[{r+4}:{r+7}], {base} offset:{off+1024}")
    colrd(0)
    for t in range(11):
        r = 64 + 12 * (t & 1)
        if t < 10:
            colrd(t + 1); a("s_waitcnt lgkmcnt(3)")
        else:
            a("s_waitcnt lgkmcnt(0)")
        a(f"L_cchk{t}:\nv_cmp_eq_u32 vcc, 0, v{r+8}\ns_cbranch_vccz L_cadd{t}")
        colrd(t)
        a(f"s_waitcnt lgkmcnt(0)\ns_branch L_cchk{t}\nL_cadd{t}:")
        for k in range(4):
            sc = pr(32 + (t & ~1))
            if t == 0: a(f"v_pk_mul_f32 {pr(48+2*k)}, {pr(r+2*k)}, {sc} op_sel_hi:[1,0]")
            else: a(f"v_pk_fma_f32 {pr(48+2*k)}, {pr(r+2*k)}, {sc}, {pr(48+2*k)} " + ("op_sel:[0,1,0] op_sel_hi:[1,1,1]" if t & 1 else "op_sel_hi:[1,0,1]"))
    encode(48); encode(52)
    a("s_cbranch_execz L_dryH")
    if dual: a(f"buffer_store_dwordx4 v[48:51], v27, {SW}, s75 offen\nbuffer_store_dwordx4 v[52:55], v27, {SW}, s75 offen offset:256")
    a(f"""buffer_store_dwordx4 v[48:51], v27, {SW}, s73 offen sc1
    buffer_store_dwordx4 v[52:55], v27, {SW}, s73 offen offset:256 sc1""")
    stamp(6)
    a("s_branch L_end\nL_dryH:\ns_mov_b64 exec, -1\ns_branch L_H")

    def spin(off, areg, t, sl=1):
        L, D = lab("sp"), lab("spd")
        a(f"""{L}:
        ds_read_b32 v{t}, v{areg} offset:{off}
        s_waitcnt lgkmcnt(0)
        v_cmp_eq_u32 vcc, 0, v{t}
        s_cbranch_vccz {D}
        s_sleep {sl}
        s_branch {L}
        {D}:""")
    sec('T')
    a(f"""L_T:
    s_sub_u32 s3, s3, 2
    v_lshrrev_b32 v13, 2, v2
    v_mul_u32_u24 v25, 48, v13
    s_lshl_b32 s29, s3, 2
    v_add_u32 v26, s29, v25
    v_mov_b32 v30, s29
    v_mov_b32 v16, 0
    v_mov_b32 v17, 0
    v_mov_b32 v18, 0
    v_mov_b32 v19, 0
    v_mov_b32 v28, {FLG}
    ds_write_b32 v30, v16 offset:{FLG}
    ds_write_b32 v30, v16 offset:{FLG+FL1}
    ds_write_b32 v30, v16 offset:{FLG+TOK}
    ds_write_b32 v30, v16 offset:{FLG+TOK+4}
    ds_write_b64 v28, v[16:17] offset:{KRDY}
    s_lshl_b32 s31, s3, 13
    s_add_u32 s28, s28, s31
    s_add_u32 s30, s28, 4096
    s_add_u32 s31, s31, {KT}
    s_mov_b32 s74, 0x11111111
    s_mov_b32 s75, 0x11111111
    s_mov_b32 s76, 0x22222222
    s_mov_b32 s77, 0x22222222
    s_mov_b32 s78, 0x44444444
    s_mov_b32 s79, 0x44444444
    s_mov_b32 s80, 0x88888888
    s_mov_b32 s81, 0x88888888
    s_mov_b32 s33, 0x05040100
    s_mov_b32 s34, 0x07060302
    v_and_b32 v12, 3, v2
    v_lshl_add_u32 v14, v12, 2, v13
    v_lshlrev_b32 v14, 8, v14
    v_xor_b32 v15, v1, v2
    v_lshl_add_u32 v14, v15, 4, v14
    v_add_u32 v4, s31, v14
    v_xor_b32 v5, 64, v4
    v_xor_b32 v6, 0x80, v4
    v_xor_b32 v7, 0xc0, v4
    v_lshlrev_b32 v15, 8, v13
    v_lshl_add_u32 v15, v1, 4, v15
    v_add_u32 v29, s31, v3
    v_mov_b32 v31, 1
    v_mov_b32 v20, 0x3db504f3
    v_mov_b32 v22, {LOG2E}
    s_waitcnt lgkmcnt(0)
    s_barrier""")
    if stamps: a("s_add_u32 s46, s3, 1")
    srd(12, P_V, 0x8000000)
    a("s_load_dword s83, s[62:63], 0")
    srd(16, P_WS, WS_BYTES)
    a(f"""s_lshl_b32 s32, s4, 1
    s_add_u32 s32, s32, s6
    s_lshl_b32 s32, s32, 11
    s_add_u32 s32, s32, {HQ}
    v_lshlrev_b32 v14, 3, v0""")
    tagsetup()
    if dry: a("s_cmp_lg_u32 s3, 7\ns_cbranch_scc1 L_att\ns_mov_b64 exec, 0")
    a("L_att:\ns_cbranch_execz L_att2")
    spin(FLG + TOK, 30, 16)
    for j in range(8):
        a(f"buffer_load_dwordx4 v[{32+4*j}:{35+4*j}], v3, {SB}, {'s28' if j < 4 else 's30'} offen offset:{(j&3)*1024} {nt}")
    stamp(1)
    a(f"""s_add_u32 s29, s3, {vd}
    s_cmp_gt_u32 s29, s35
    s_cbranch_scc1 L_att2
    s_waitcnt vmcnt({vx})
    ds_write_b32 v30, v31 offset:{FLG+TOK+4*vd}
    s_cmp_ge_u32 s3, {nq}
    s_cbranch_scc1 L_att2""")
    poll([f"buffer_load_dwordx4 v[144:147], v27, {SW}, s32 offen sc1", f"buffer_load_dwordx4 v[148:151], v27, {SW}, s32 offen offset:1024 sc1"], [144, 148], 16, two=(27, 3))
    stamp(7)
    a(f"""v_perm_b32 v16, v145, v144, s34
    v_perm_b32 v17, v147, v146, s34
    v_perm_b32 v18, v149, v148, s34
    v_perm_b32 v19, v151, v150, s34
    ds_write_b64 v14, v[16:17] offset:{QL}
    ds_write_b64 v14, v[18:19] offset:{QL+512}
    ds_write_b32 v28, v28 offset:{QRDY}""")
    a("L_att2:")
    spin(KRDY, 28, 16)
    for i in range(4):
        for t in range(2):
            a(f"ds_read_b128 v[{96+16*t+4*i}:{99+16*t+4*i}], v{4+i} offset:{t*4096}")
    stamp(2)
    spin(QRDY, 28, 16)
    stamp(3)
    for i in range(4):
        a(f"ds_read_b128 v[{128+4*i}:{131+4*i}], v15 offset:{QL+64*i}")
    for i in range(4):
        a(f"s_waitcnt lgkmcnt({0 if stamps else 3-i})")
        for t in range(2):
            c = "0" if i == 0 else f"v[{152+4*t}:{155+4*t}]"
            a(f"v_mfma_f32_16x16x32_bf16 v[{152+4*t}:{155+4*t}], v[{96+16*t+4*i}:{99+16*t+4*i}], v[{128+4*i}:{131+4*i}], {c}")
    round4(152, 152, 16); round4(156, 156, 18)
    for k in range(4): pkmul(152 + 2 * k, 152 + 2 * k, 20, "op_sel_hi:[1,0]")
    round4(152, 152, 16); round4(156, 156, 18)
    a("""v_max3_f32 v16, v152, v153, v154
    v_max3_f32 v17, v155, v156, v157
    v_max3_f32 v16, v16, v158, v159
    v_max_f32 v16, v16, v17""")
    fold(16, 16, 17, 1, "v_max_f32"); fold(32, 16, 17, 1, "v_max_f32")
    a(f"ds_write_b32 v26, v16 offset:{MX}")
    for k in range(4): pkadd(152 + 2 * k, 152 + 2 * k, 16, NEGB)
    for k in range(4): pkmul(152 + 2 * k, 152 + 2 * k, 22, "op_sel_hi:[1,0]")
    for k in range(8): a(f"v_exp_f32 v{152+k}, v{152+k}")
    add4(96, 152, 156); pkadd(96, 96, 98)
    a("v_add_f32 v17, v96, v97")
    fold(16, 17, 18, 1); fold(32, 17, 18, 1)
    a(f"ds_write_b32 v26, v17 offset:{LS}\nds_write_b32 v30, v31 offset:{FLG+FL1}")
    for k in range(4): a(f"v_cvt_pk_bf16_f32 v{96+k}, v{152+2*k}, v{153+2*k}")
    for s in range(4):
        for k in range(4): a(f"v_cndmask_b32 v{128+4*s+k}, 0, v{96+k}, s[{74+2*s}:{75+2*s}]")
    stamp(4)
    for p in range(4):
        a(f"s_waitcnt vmcnt({6-2*p})")
        if p == 3: stamp(5)
        for i in range(8):
            a(f"v_perm_b32 v{64+4*i+p}, v{32+4*(2*p+1)+(i>>1)}, v{32+4*(2*p)+(i>>1)}, {'s34' if i & 1 else 's33'}")
    for aa in range(2):
        for s in range(4):
            i = 2 * s + aa
            c = "0" if s == 0 else f"v[{152+4*aa}:{155+4*aa}]"
            a(f"v_mfma_f32_16x16x32_bf16 v[{152+4*aa}:{155+4*aa}], v[{64+4*i}:{67+4*i}], v[{128+4*s}:{131+4*s}], {c}")
    a(f"""ds_write_b128 v29, v[152:155]
    ds_write_b128 v29, v[156:159] offset:1024
    ds_write_b32 v30, v31 offset:{FLG}
    s_waitcnt lgkmcnt(0)""")
    stamp(6)
    a(f"""s_cbranch_execnz L_pf
    s_mov_b64 exec, -1
    s_branch L_att
    L_pf:""")
    if late:
        a("s_cmp_lg_u32 s3, 0\ns_cbranch_scc1 L_end")
        srd(20, P_WO, 4096 * 1024)
        a(f"""s_sub_u32 s28, s5, 8
        s_mul_i32 s29, s28, {22*1024}
        s_min_u32 s29, s29, {(512-24)*1024}
        s_lshl_b32 s30, s4, 19
        s_add_u32 s29, s29, s30
        v_lshlrev_b32 v27, 7, v0""")
        for k in range(3): a(f"buffer_load_dword v16, v27, {SC}, s29 offen {pfl}\ns_add_u32 s29, s29, 8192")
        a(f"""s_mul_i32 s72, s4, 24
        s_add_u32 s72, s72, s28
        s_lshl_b32 s72, s72, 7
        s_add_u32 s72, s72, {HG}
        s_add_u32 s73, s72, {LOC}
        v_mov_b32 v12, 0
        s_and_b32 s29, s28, 7
        s_lshl_b32 s30, s35, 2
        v_mov_b32 v30, s30
        s_cmp_ge_u32 s28, 16
        s_cbranch_scc1 L_pfd
        s_cmp_lt_u32 s28, 8
        s_cselect_b32 s20, s{P_WG}, s{P_WU}
        s_cselect_b32 s21, s{P_WG+1}, s{P_WU+1}
        s_mov_b32 s22, {512*3584}
        s_cmp_lt_u32 s4, 4
        s_cselect_b32 s31, 3, 2
        v_and_b32 v14, 3, v0
        v_min_u32 v14, s31, v14
        v_lshrrev_b32 v13, 2, v0
        v_mul_u32_u24 v13, 3584, v13
        v_lshl_add_u32 v13, v14, 10, v13
        s_mul_i32 s30, s29, {64*3584}
        s_lshl_b32 s31, s4, 7
        s_add_u32 s30, s30, s31
        s_mov_b32 s31, {16*3584}
        s_branch L_pfg
        L_pfd:
        s_mov_b32 s20, s{P_WD}
        s_mov_b32 s21, s{P_WD+1}
        s_mov_b32 s22, {1792*1024}
        v_lshlrev_b32 v13, 7, v0
        s_lshr_b32 s30, s29, 1
        s_lshl_b32 s30, s30, 3
        s_add_u32 s30, s30, s4
        s_lshl_b32 s30, s30, 1
        s_and_b32 s29, s29, 1
        s_add_u32 s30, s30, s29
        s_lshl_b32 s30, s30, 15
        s_mov_b32 s31, 8192
        L_pfg:
        s_waitcnt vmcnt(0)
        s_mov_b64 exec, 1
        buffer_store_dwordx4 v[8:11], v12, {SW}, s73 offen
        buffer_store_dwordx4 v[8:11], v12, {SW}, s72 offen sc1
        s_mov_b64 exec, -1""")
        stamp(2)
        spin(FLG + TOK, 30, 16)
        for k in range(4):
            a(f"buffer_load_dword v16, v13, {SC}, s30 offen {pfl}\ns_add_u32 s30, s30, s31")
            if k == 1: a("s_waitcnt vmcnt(1)")
        a(f"""s_waitcnt vmcnt(0)
        s_mov_b64 exec, 1
        buffer_store_dwordx4 v[8:11], v12, {SW}, s73 offen offset:16
        buffer_store_dwordx4 v[8:11], v12, {SW}, s72 offen offset:16 sc1
        s_mov_b64 exec, -1""")
        stamp(7)
    a("s_branch L_end")

    sec('Me')
    a(f"""L_M:
    s_mov_b32 s3, 12
    s_cmp_eq_u32 s35, 11
    s_cbranch_scc1 L_T
    s_setprio 3
    s_sub_u32 s33, s5, 24
    s_lshl_b32 s33, s33, 3
    s_add_u32 s33, s33, s4
    s_and_b32 s6, s33, 15
    s_lshr_b32 s7, s33, 4
    v_lshlrev_b32 v12, 3, v2
    v_and_b32 v13, 1, v1
    v_lshl_add_u32 v13, v13, 10, v12
    v_lshrrev_b32 v14, 5, v0
    v_lshl_add_u32 v61, v14, 7, v13
    s_lshl_b32 s28, s7, 8
    v_mul_u32_u24 v14, {16*6144}, v1
    v_add_u32 v14, v14, v12
    s_mul_i32 s30, s7, {128*6144}
    s_lshl_b32 s31, s6, 7
    s_add_u32 s30, s30, s31
    s_waitcnt lgkmcnt(0)
    s_load_dword s83, s[62:63], 0""")
    if stamps: a("s_mov_b32 s46, 11")
    srd(20, P_C, 2048); srd(8, P_WM, 512 * 6144)
    a(f"buffer_load_dwordx2 v[52:53], v61, {SC}, s28 offen")
    wloads(64, 32, "v14", SA, "s30", [((jj >> 4) * 64 + (jj & 15)) * 6144 for jj in range(32)], w=2)
    stamp(1)
    a(f"""v_lshrrev_b32 v13, 2, v2
    v_mul_u32_u24 v25, 48, v13
    v_mov_b32 v16, 0
    v_mov_b32 v17, 0
    v_mov_b32 v18, 0
    v_mov_b32 v19, 0
    v_mov_b32 v20, 0xff800000
    v_add_u32 v29, {KT+10*8192}, v3
    v_mov_b32 v63, {FLG}
    ds_write_b32 v25, v20 offset:{MX+40}
    ds_write_b32 v25, v16 offset:{LS+40}
    ds_write_b128 v29, v[16:19]
    ds_write_b128 v29, v[16:19] offset:1024
    ds_write_b32 v63, v63 offset:40
    ds_write_b32 v63, v63 offset:{FL1+40}
    s_waitcnt lgkmcnt(0)
    s_barrier""")
    srd(16, P_WS, WS_BYTES)
    selsetup(); tagsetup()
    a(f"""v_and_b32 v60, 31, v0
    v_lshlrev_b32 v60, 4, v60
    s_lshl_b32 s73, s6, 2
    s_add_u32 s73, s73, s7
    s_lshl_b32 s73, s73, 9
    s_add_u32 s73, s73, {HM_E}
    v_lshlrev_b32 v58, 3, v0
    v_bfe_u32 v59, v2, 2, 1
    v_lshlrev_b32 v59, 7, v59
    v_lshl_add_u32 v59, v1, 5, v59
    s_waitcnt vmcnt(32)""")
    unpack4(32, 52)
    silu(4, 32, 32, 36)
    a(f"""v_cvt_pk_bf16_f32 v56, v32, v33
    v_cvt_pk_bf16_f32 v57, v34, v35
    ds_write_b64 v58, v[56:57] offset:{RED}
    ds_read_b128 v[16:19], v59 offset:{RED}
    ds_read_b128 v[20:23], v59 offset:{RED+16}
    ds_read_b128 v[24:27], v59 offset:{RED+256}
    ds_read_b128 v[28:31], v59 offset:{RED+272}
    s_waitcnt lgkmcnt(0)""")
    gemv(16, 16, [64], [44], waits=[30 - 2 * m for m in range(16)])
    encode(44)
    a(f"""s_mov_b32 exec_hi, 0
    buffer_store_dwordx4 v[44:47], v60, {SW}, s73 offen sc1
    s_mov_b32 exec_hi, -1""")
    stamp(2)
    a("s_branch L_Ml")
    sec('Ml')
    a(f"""L_Ml:
    s_setprio 0
    s_lshr_b32 s7, s33, 5
    s_bfe_u32 s6, s33, 0x20003
    s_lshl_b32 s28, s7, 9
    buffer_load_dwordx2 v[52:53], v61, {SC}, s28 offen
    buffer_load_dwordx2 v[54:55], v61, {SC}, s28 offen offset:256
    s_mul_i32 s30, s7, {256*6144}
    s_lshl_b32 s31, s6, 10
    s_add_u32 s30, s30, s31
    s_lshl_b32 s31, s4, 7
    s_add_u32 s30, s30, s31
    s_add_u32 s30, s30, 2048""")
    vo64(63, 6144, 12)
    wloads(64, 8, "v63", SA, "s30", [2 * m * 6144 for m in range(8)])
    a(f"""s_lshl_b32 s73, s4, 3
    s_lshl_b32 s31, s7, 2
    s_add_u32 s73, s73, s31
    s_add_u32 s73, s73, s6
    s_lshl_b32 s73, s73, 9
    s_add_u32 s73, s73, {HM_L}
    v_and_b32 v62, 7, v2
    v_lshlrev_b32 v62, 5, v62
    v_lshrrev_b32 v12, 3, v2
    v_lshl_add_u32 v62, v12, 4, v62
    v_and_b32 v12, 1, v1
    v_lshl_add_u32 v62, v12, 8, v62
    s_mov_b32 s72, 4
    s_waitcnt vmcnt(8)""")
    unpack4(32, 52); unpack4(36, 54)
    silu(8, 32, 32, 40)
    for k in range(4): a(f"v_cvt_pk_bf16_f32 v{52+k}, v{32+2*k}, v{33+2*k}")
    a(f"ds_write_b64 v58, v[52:53] offset:{RED}\nds_write_b64 v58, v[54:55] offset:{RED+512}")
    for k in range(4): a(f"v_mov_b32 v{44+k}, 0")
    a(f"L_Mq:\nds_read_b128 v[24:27], v59 offset:{RED}\nds_read_b128 v[28:31], v59 offset:{RED+16}\nv_add_u32 v59, 256, v59")
    fix64(64, 48, after=0)
    a("s_waitcnt lgkmcnt(0)")
    gemv(8, 24, [64], [44], first=False)
    a(f"s_sub_u32 s72, s72, 1\ns_cmp_eq_u32 s72, 0\ns_cbranch_scc1 L_Md\ns_add_u32 s30, s30, {64*6144}")
    wloads(64, 8, "v63", SA, "s30", [2 * m * 6144 for m in range(8)])
    a("s_branch L_Mq\nL_Md:")
    encode(44)
    a(f"""s_mov_b32 exec_hi, 0
    buffer_store_dwordx4 v[44:47], v62, {SW}, s73 offen sc1
    s_mov_b32 exec_hi, -1""")
    stamp(4)
    a("s_branch L_end")

    sec('W')
    def gowait(which, thr):
        L, D = lab("go"), lab("god")
        a(f"""v_min_u32 v23, 23, v0
        v_lshlrev_b32 v23, 7, v23
        s_mul_i32 s33, s4, {24*128}
        s_add_u32 s33, s33, {HG+16*which}
        s_mov_b32 s71, {POLL_MAX-1}
        {L}:
        s_and_b32 s47, s71, 3
        s_cselect_b32 s47, {LOC}, 0
        v_add_u32 v22, s47, v23
        buffer_load_dwordx4 v[32:35], v22, {SW}, s33 offen sc1
        s_sub_u32 s71, s71, 1
        s_cbranch_scc1 {D}
        s_waitcnt vmcnt(0)""")
        decode([32], 36)
        a(f"""s_and_b32 s47, vcc_lo, 0xffffff
        s_bcnt1_i32_b32 s47, s47
        s_cmp_gt_u32 s47, {24-thr}
        s_cbranch_scc1 {L}
        {D}:""")
    def wcommon():
        srd(16, P_WS, WS_BYTES)
        selsetup(); shufsetup(); tagsetup()
        a(f"""v_and_b32 v60, 31, v0
        v_lshlrev_b32 v60, 4, v60
        s_lshl_b32 s29, s3, 10
        s_add_u32 s29, s29, {RED}
        v_add_u32 v20, s29, v3
        s_mov_b32 s34, 0
        s_mov_b32 s35, -1""")
    a(f"""L_W:
    s_cmp_ge_u32 s3, 8
    s_cbranch_scc1 L_exit
    v_lshlrev_b32 v12, 3, v2
    v_and_b32 v15, 1, v1
    v_lshl_add_u32 v63, v15, 10, v12
    v_lshrrev_b32 v15, 5, v0
    v_lshl_add_u32 v63, v15, 2, v63
    s_lshl_b32 s32, s3, 7
    s_cmp_ge_u32 s5, 4
    s_cbranch_scc1 L_W2
    v_lshlrev_b32 v12, 4, v2
    v_lshl_add_u32 v53, v1, 17, v12
    s_lshl_b32 s82, s3, 19
    s_lshl_b32 s31, s4, 10
    s_add_u32 s82, s82, s31
    s_lshl_b32 s31, s5, 8
    s_add_u32 s82, s82, s31
    s_waitcnt lgkmcnt(0)
    s_load_dword s83, s[62:63], 0""")
    if stamps: a("s_mov_b32 s46, s3")
    srd(24, P_X, 2048); srd(12, P_WQ, 512 * 8192)
    a(f"buffer_load_dword v54, v63, {SD}, s32 offen")
    if qfirst: wloads(96, 16, "v53", SB, "s82", [jj * 8192 for jj in range(16)])
    wcommon()
    a(f"""v_lshrrev_b32 v61, 5, v0
    v_lshl_add_u32 v21, v61, 12, v60
    v_lshl_add_u32 v61, v61, 14, v60
    s_lshl_b32 s29, s3, 9
    s_add_u32 s29, s29, {RED}
    v_add_u32 v21, s29, v21
    s_lshl_b32 s30, s3, 11
    s_add_u32 s30, s30, {HM_E}
    v_and_b32 v62, 1, v1
    v_lshlrev_b32 v62, 11, v62
    v_lshl_add_u32 v62, v2, 5, v62
    s_lshl_b32 s73, s4, 12
    s_lshl_b32 s28, s5, 9
    s_add_u32 s73, s73, s28
    s_lshl_b32 s28, s3, 4
    s_add_u32 s73, s73, s28
    s_add_u32 s73, s73, {HQ}
    s_add_u32 s81, s73, {LOC}
    s_mov_b32 s72, 0""")
    if dry: a("s_mov_b64 exec, 0\ns_branch L_Q")
    a(f"L_Q0:\ns_waitcnt vmcnt({16 if qfirst else 0})")
    unpack2(164, 54)
    ln2(164, 16, 36, False)
    stamp(5)
    if not qfirst: wloads(96, 16, "v53", SB, "s82", [jj * 8192 for jj in range(16)])
    a("L_Q:")
    def preq():
        a("s_waitcnt vmcnt(4)"); fix128(96); stamp(2)
    poll([f"buffer_load_dwordx4 v[{64+4*k}:{67+4*k}], v61, {SW}, s30 offen offset:{512*k} sc1" for k in range(4)], [64, 68, 72, 76], 32, pre=preq)
    stamp(3)
    add4(64, 64, 68); add4(72, 72, 76); add4(64, 64, 72)
    a("v_permlane32_swap_b32 v64, v66\nv_permlane32_swap_b32 v65, v67")
    round4(64, 64, 36)
    a("v_pk_add_f32 v[66:67], v[66:67], 1.0 op_sel_hi:[1,0]")
    round2(66, 66, 36)
    pkmul(66, 66, 16)
    round2(66, 66, 36)
    pkadd(66, 66, 64)
    a("v_cvt_pk_bf16_f32 v55, v66, v67")
    a("L_G8:")
    shuffle(55)
    gemv(8, 24, [96, 100], [44, 48], stride=8)
    for k in range(4): a(f"v_cndmask_b32 v{44+k}, v{44+k}, v{48+k}, s[34:35]")
    a("ds_write_b128 v20, v[44:47]")
    barrier_nd()
    a("s_cmp_ge_u32 s3, 2\ns_cbranch_scc1 L_RPd")
    for k in range(4): a(f"ds_read_b128 v[{32+4*k}:{35+4*k}], v21 offset:{1024*k}")
    a("s_waitcnt lgkmcnt(0)")
    add4(32, 32, 36); add4(40, 40, 44); add4(32, 32, 40)
    fold(32, 32, 36)
    a("s_cmp_lg_u32 s72, 0\ns_cbranch_scc1 L_RPn")
    round4(32, 32, 36)
    encode(32, False)
    a("s_cbranch_execz L_RPn\ns_mov_b32 exec_hi, 0")
    if dual: a(f"buffer_store_dwordx4 v[32:35], v62, {SW}, s81 offen")
    a(f"""buffer_store_dwordx4 v[32:35], v62, {SW}, s73 offen sc1
    s_mov_b32 exec_hi, -1
    s_branch L_RPd
    L_RPn:""")
    encode(32)
    a(f"""s_cbranch_execz L_RPd
    s_mov_b32 exec_hi, 0
    buffer_store_dwordx4 v[32:35], v62, {SW}, s73 offen sc1
    s_mov_b32 exec_hi, -1
    L_RPd:
    s_cbranch_execnz L_RPr
    s_mov_b64 exec, -1
    s_branch L_Q0
    L_RPr:
    s_cmp_lg_u32 s72, 0
    s_cbranch_scc1 L_end""")
    stamp(4)
    srd(8, P_WO, 4096 * 1024)
    a(f"""v_lshlrev_b32 v12, 4, v2
    v_lshl_add_u32 v53, v1, 15, v12
    s_lshl_b32 s82, s4, 9
    s_lshr_b32 s28, s3, 1
    s_lshl_b32 s29, s28, 7
    s_add_u32 s82, s82, s29
    s_and_b32 s29, s3, 1
    s_add_u32 s82, s82, s29
    s_lshl_b32 s82, s82, 10
    s_lshl_b32 s29, s5, 8
    s_add_u32 s82, s82, s29""")
    a(f"""v_lshl_add_u32 v61, v1, 11, v12
    s_mul_i32 s30, s4, {24*2048}
    s_lshl_b32 s29, s3, 8
    s_add_u32 s30, s30, s29
    s_add_u32 s30, s30, {HA}
    v_and_b32 v12, 3, v2
    v_min_u32 v12, 2, v12
    v_bfe_u32 v13, v2, 2, 1
    v_mul_u32_u24 v13, 12, v13
    v_lshl_add_u32 v13, v12, 2, v13
    v_add_u32 v13, v13, v1
    v_lshlrev_b32 v63, 7, v13
    s_mul_i32 s31, s4, {24*128}
    s_lshl_b32 s29, s28, 4
    s_add_u32 s31, s31, s29
    s_add_u32 s31, s31, {HML}
    s_mov_b32 s74, 0x77777777
    s_mov_b32 s75, 0x77777777
    v_lshrrev_b32 v12, 3, v2
    v_lshlrev_b32 v62, 12, v12
    v_and_b32 v12, 1, v1
    v_lshl_add_u32 v62, v12, 8, v62
    v_and_b32 v12, 7, v2
    v_lshl_add_u32 v62, v12, 5, v62
    s_lshl_b32 s73, s5, 13
    s_lshl_b32 s29, s4, 9
    s_add_u32 s73, s73, s29
    s_lshl_b32 s29, s3, 4
    s_add_u32 s73, s73, s29
    s_add_u32 s73, s73, {HW}
    v_add_u32 v20, 0x2000, v20
    v_add_u32 v21, 0x2000, v21
    s_mov_b32 s72, 2""")
    for j in range(1, 6): a(f"s_add_u32 s{75+j}, s30, {j*8192}")
    if dry: a("s_mov_b64 exec, 0\ns_branch L_WO")
    a("L_WO0:")
    if late: gowait(0, thr1)
    else: a("s_barrier")
    wloads(96, 16, "v53", SA, "s82", [(8 * (jj & 3) + 2 * (jj >> 2)) * 1024 for jj in range(16)])
    a("L_WO:")
    def preo():
        a("s_waitcnt vmcnt(1)"); fix128(96); stamp(7)
    poll([f"buffer_load_dwordx4 v[88:91], v22, {SW}, s31 offen sc1"], [88], 32, two=(22, 63), pre=preo)
    stamp(1)
    a(f"""v_max_f32_dpp v12, v88, v88 quad_perm:[1,0,3,2] {DPPM}
    v_max_f32_dpp v12, v12, v12 quad_perm:[2,3,0,1] {DPPM}""")
    fold(16, 12, 33, 1, "v_max_f32"); fold(32, 12, 33, 1, "v_max_f32")
    a(f"""v_sub_f32 v12, v88, v12
    v_mul_f32 v12, {LOG2E}, v12
    v_exp_f32 v12, v12
    v_cndmask_b32 v89, 0, v89, s[74:75]
    v_mul_f32 v33, v12, v89
    v_add_f32_dpp v33, v33, v33 quad_perm:[1,0,3,2] {DPPM}
    v_add_f32_dpp v33, v33, v33 quad_perm:[2,3,0,1] {DPPM}""")
    fold(16, 33, 34, 1); fold(32, 33, 34, 1)
    a("v_rcp_f32 v33, v33\nv_mul_f32 v12, v12, v33")
    for j in range(6): a(f"v_mov_b32_dpp v{14+j}, v12 row_newbcast:{4*(j//3)+j%3} {DPPM}")
    poll([f"buffer_load_dwordx4 v[{64+4*j}:{67+4*j}], v22, {SW}, {'s30' if j == 0 else 's%d' % (75+j)} offen sc1" for j in range(6)],
         [64 + 4 * j for j in range(6)], 32, two=(22, 61))
    stamp(6)
    for jj in range(3):
        for b in range(2):
            j = 3 * b + jj
            sc = 14 + (j & ~1)
            for h in range(2):
                d = 36 + 4 * b + 2 * h
                sel = "op_sel:[0,1,0] op_sel_hi:[1,1,1]" if j & 1 else "op_sel_hi:[1,0,1]"
                if jj == 0:
                    sel = "op_sel:[0,1] op_sel_hi:[1,1]" if j & 1 else "op_sel_hi:[1,0]"
                    a(f"v_pk_mul_f32 {pr(d)}, {pr(64+4*j+2*h)}, {pr(sc)} {sel}")
                else:
                    a(f"v_pk_fma_f32 {pr(d)}, {pr(64+4*j+2*h)}, {pr(sc)}, {pr(d)} {sel}")
    for k in range(4): a(f"v_permlane16_swap_b32 v{36+k}, v{40+k}")
    add4(36, 36, 40)
    halve32(36)
    a("v_cvt_pk_bf16_f32 v55, v36, v37")
    a("s_cbranch_execnz L_G8\ns_mov_b64 exec, -1\ns_branch L_WO0")

    a(f"""L_W2:
    s_sub_u32 s6, s5, 4
    s_lshl_b32 s5, s6, 3
    s_add_u32 s5, s5, s4
    s_cmp_ge_u32 s5, 28
    s_cbranch_scc1 L_exit""")
    a("s_waitcnt lgkmcnt(0)\ns_load_dword s83, s[62:63], 0")
    if stamps: a("s_mov_b32 s46, s3")
    srd(24, P_X, 2048)
    a(f"buffer_load_dword v54, v63, {SD}, s32 offen")
    def floads():
        a(f"""v_cmp_gt_u32 vcc, 8, v2
    v_mov_b32 v12, s{P_WU}
    v_mov_b32 v14, s{P_WG}
    v_cndmask_b32 v12, v12, v14, vcc
    v_mov_b32 v13, s{P_WU+1}
    v_mov_b32 v14, s{P_WG+1}
    v_cndmask_b32 v13, v13, v14, vcc
    v_mul_u32_u24 v14, {16*3584}, v1
    v_and_b32 v15, 7, v2
    v_lshl_add_u32 v14, v15, 4, v14
    s_mul_i32 s80, s3, {64*3584}
    s_lshl_b32 s81, s5, 7
    s_add_u32 s80, s80, s81
    v_add_u32 v14, s80, v14
    v_add_co_u32 v12, vcc, v12, v14
    v_addc_co_u32 v13, vcc, 0, v13, vcc
    s_mov_b32 s80, 7168
    s_mov_b32 s81, 0""")
        for m in range(8):
            a(f"global_load_dwordx4 v[{96+8*m}:{99+8*m}], v[12:13], off {nt}")
            a(f"global_load_dwordx4 v[{100+8*m}:{103+8*m}], v[12:13], off offset:3584 {nt}")
            if m < 7: a("v_lshl_add_u64 v[12:13], v[12:13], 0, s[80:81]")
        srd(20, P_WD, 1792 * 1024)
        vo64(13, 1024, 14)
        a("s_lshl_b32 s81, s5, 16\ns_add_u32 s81, s81, s32")
        wloads(64, 8, "v13", SC, "s81", [2 * m * 1024 for m in range(8)])
    if fearly: floads()
    wcommon()
    a(f"""v_and_b32 v52, 7, v2
    v_lshlrev_b32 v52, 5, v52
    v_lshrrev_b32 v53, 3, v2
    v_lshl_add_u32 v52, v53, 4, v52
    s_waitcnt vmcnt({24 if fearly else 0})""")
    unpack2(164, 54)
    srd(24, P_OUT, 2048)
    a(f"""s_lshl_b32 s31, s3, 12
    s_add_u32 s30, s31, {HM_L}
    s_add_u32 s31, s31, {HW}
    v_add_u32 v61, 0x4000, v20
    v_lshrrev_b32 v12, 5, v0
    v_lshl_add_u32 v60, v12, 11, v60
    v_lshrrev_b32 v12, 3, v2
    v_and_b32 v13, 0x37, v0
    v_lshlrev_b32 v54, 4, v13
    v_lshl_add_u32 v54, v12, 3, v54
    v_add_u32 v54, {RED+16384}, v54
    s_lshl_b32 s28, s3, 9
    s_add_u32 s28, s28, {SH}
    v_lshlrev_b32 v53, 2, v12
    v_and_b32 v12, 1, v1
    v_lshl_add_u32 v53, v12, 7, v53
    v_and_b32 v13, 7, v2
    v_lshl_add_u32 v53, v13, 4, v53
    v_lshrrev_b32 v13, 5, v0
    v_lshl_add_u32 v53, v13, 3, v53
    v_add_u32 v53, s28, v53
    v_mul_u32_u24 v62, {28*256}, v12
    v_add_u32 v62, v62, v52
    s_mul_i32 s73, s3, {2*28*256}
    s_lshl_b32 s29, s5, 8
    s_add_u32 s73, s73, s29
    s_add_u32 s73, s73, {HF}
    s_mul_i32 s76, s5, {28*256}
    s_add_u32 s76, s76, {HF}
    s_add_u32 s77, s76, 4096
    s_and_b32 s29, s5, 1
    s_lshl_b32 s29, s29, 4
    s_lshl_b32 s78, 0xffff, s29
    s_mov_b32 s79, s78""")
    if dry: a("s_mov_b64 exec, 0\ns_branch L_F")
    a("L_F1:")
    if late: gowait(1, thr2)
    stamp(2)
    if not fearly: floads()
    a("L_F:")
    def pref():
        a("s_waitcnt vmcnt(12)"); fix128(96); fix64(64, 48, after=4); stamp(5)
    poll([f"buffer_load_dwordx4 v[{32+4*k}:{35+4*k}], v60, {SW}, s30 offen offset:{512*k} sc1" for k in range(4)], [32, 36, 40, 44], 48, pre=pref)
    for k in range(4):
        halve32(32 + 4 * k)
        round2(12 + 2 * k, 32 + 4 * k, 48)
    a("v_pk_add_f32 v[16:17], v[16:17], 1.0 op_sel_hi:[1,0]")
    round2(16, 16, 32)
    poll([f"buffer_load_dwordx4 v[{32+4*k}:{35+4*k}], v3, {SW}, s31 offen offset:{1024*k} sc1" for k in range(4)], [32, 36, 40, 44], 48)
    stamp(6)
    add4(32, 32, 36); add4(40, 40, 44); add4(32, 32, 40)
    halve32(32)
    round2(32, 32, 36)
    pkmul(32, 32, 12)
    round2(32, 32, 36)
    pkadd(32, 32, 164)
    round2(22, 32, 36)
    ln2(22, 32, 36)
    pkmul(32, 32, 16)
    round2(32, 32, 36)
    pkadd(32, 32, 14)
    a("v_cvt_pk_bf16_f32 v55, v32, v33")
    shuffle(55)
    gemv(8, 24, [96, 100], [44, 48], stride=8)
    for k in range(4): a(f"v_cndmask_b32 v{44+k}, v{44+k}, v{48+k}, s[34:35]")
    a("ds_write_b128 v61, v[44:47]")
    barrier_nd()
    for w in range(8):
        if w in (2, 4, 6): a(f"v_add_u32 v{48+w//2}, {1024*w}, v54")
        base = "v54" if w < 2 else f"v{48+w//2}"
        a(f"ds_read2_b64 v[{96+4*w}:{99+4*w}], {base} offset0:{128*(w&1)} offset1:{128*(w&1)+16}")
    a("s_waitcnt lgkmcnt(0)")
    for st in (16, 8):
        for k in range(0, st, 2): pkadd(96 + k, 96 + k, 96 + st + k)
    add4(48, 96, 100)
    round4(48, 48, 36)
    silu(2, 44, 48, 40)
    round2(44, 44, 36)
    pkmul(44, 44, 50)
    a("v_cvt_pk_bf16_f32 v55, v44, v45")
    shuffle(55, 53)
    gemv(8, 24, [64], [44])
    encode(44)
    S = lab("fs")
    a(f"""s_cbranch_execz {S}
    s_mov_b32 exec_hi, 0
    buffer_store_dwordx4 v[44:47], v62, {SW}, s73 offen sc1
    s_mov_b32 exec_hi, -1""")
    stamp(7)
    a(f"""s_lshr_b32 s28, s5, 1
    s_cmp_lg_u32 s28, s3
    s_cbranch_scc1 L_end
    {S}:""")
    poll([f"buffer_load_dwordx4 v[{96+4*k}:{99+4*k}], v3, {SW}, {'s76' if k < 4 else 's77'} offen offset:{1024*(k&3)} sc1" for k in range(7)], [96 + 4 * k for k in range(7)], 32)
    stamp(1)
    for k in range(0, 12, 2): pkadd(96 + k, 96 + k, 112 + k)
    for k in range(0, 8, 2): pkadd(96 + k, 96 + k, 104 + k)
    add4(40, 96, 100)
    halve32(40)
    a("v_mov_b32 v42, v40\nv_mov_b32 v43, v41\nv_permlane16_swap_b32 v40, v42\nv_permlane16_swap_b32 v41, v43")
    pkadd(40, 40, 42)
    round2(40, 40, 36)
    pkmul(40, 40, 18)
    round2(40, 40, 36)
    pkadd(40, 40, 22)
    a(f"""v_cvt_pk_bf16_f32 v36, v40, v41
    s_cbranch_execz L_dry2
    s_mov_b64 exec, s[78:79]
    buffer_store_dword v36, v63, {SD}, s32 offen
    s_mov_b64 exec, -1
    s_cmp_lg_u32 s5, 0
    s_cbranch_scc1 L_end
    v_mov_b32 v36, s68
    v_mov_b32 v37, 0
    s_mov_b64 exec, 1
    buffer_store_dword v36, v37, {SW}, 0 offen
    s_mov_b64 exec, -1
    s_branch L_end
    L_dry2:
    s_mov_b64 exec, -1
    s_branch L_F1""")

    sec('end')
    a("L_end:")
    if stamps:
        stamp(8)
        a(f"""s_waitcnt lgkmcnt(0)
        s_lshl_b32 s28, s2, 4
        s_add_u32 s28, s28, s46
        s_lshl_b32 s28, s28, 6
        s_add_u32 s28, s28, {STAMP}
        v_mov_b32 v37, s28
        s_mov_b64 exec, 1""")
        for k in range(9):
            a(f"v_mov_b32 v36, s{84+2*k}\nglobal_store_dword v37, v36, s[62:63] offset:{4*k}")
    a("L_exit:\ns_endpgm")

    o = sum([secs[n] for n in ('entry', 'Me', 'W', 'H', 'T', 'Ml', 'end')], [])
    body = pad(o)
    out = [HEADER.rstrip("\n"),
           "; Fused persistent kernel: 256 workgroups (one per CU), roles by workgroup id, tagged 16-byte hand-offs through d_ws.",
           f"; @launch grid=(256,1,1) block=({NW*64},1,1) lds={LDS_BYTES}",
           '.amdgcn_target "amdgcn-amd-amdhsa--gfx950"', ".text", f".globl {NAME}_kernel", ".p2align 12",
           f".type {NAME}_kernel,@function", f"{NAME}_kernel:"]
    out += [("" if l.endswith(":") else "    ") + l for l in body]
    out += ['.section .rodata,"a"', ".p2align 6", f".amdhsa_kernel {NAME}_kernel",
            "  .amdhsa_next_free_vgpr 168", "  .amdhsa_next_free_sgpr 102", "  .amdhsa_accum_offset 168",
            "  .amdhsa_group_segment_fixed_size 0", "  .amdhsa_kernarg_size 112", "  .amdhsa_user_sgpr_count 2",
            "  .amdhsa_user_sgpr_kernarg_segment_ptr 1", "  .amdhsa_system_sgpr_workgroup_id_x 1",
            "  .amdhsa_float_denorm_mode_32 3", ".end_amdhsa_kernel"]
    return "\n".join(out) + "\n"

if __name__ == "__main__":
    import argparse
    ap = argparse.ArgumentParser()
    ap.add_argument("-o", default="cdna_kernels/" + NAME + ".s")
    ap.add_argument("--stamps", action="store_true")
    ap.add_argument("--kw", default="")
    args = ap.parse_args()
    kw = eval("dict(" + args.kw + ")")
    open(args.o, "w").write(gen(stamps=args.stamps, **kw))
```

```python
import sys
sys.path.insert(0, "gen")
from asmlib import pad

NAME = "adaLN_cond__sliding_block_cached__swiglu_ffn__decode"
HEADER = open("cdna_kernels/" + NAME + ".s.ref").read().split("; Override launch")[0]

HG = 0x38000
HM_E, HQ, HML, HA, HW, HM_L, HF, STAMP = 0x10000, 0x20000, 0x30000, 0x40000, 0xB0000, 0xC0000, 0xD0000, 0x200000
WS_BYTES = 0x400000
NW = 12
MX, LS, FLG, ST = 0, 192, 384, 512
KRDY, QRDY, OST, QGO, FL1, TOK = 48, 52, 56, 60, 64, 384
QL = 1024
SH = 1024
RED = 6144
XG = RED + 16384
KT = RED + 3 * 8192
LDS_BYTES = KT + 11 * 8192
assert KT % 256 == 0
LOG2E = "0x3fb8aa3b"
POLL_MAX = 1 << 16
LOC = 0x100000
DPPM = "row_mask:0xf bank_mask:0xf"

def gen(stamps=False, nt='nt', dry=True, win1=24, t1=3, win2=28, vd=4, vx=4, dual=True, gm=63, qp=(8, 9), pk=0, fwhen=1, pff=True, evs=1, npo=3, pml=True, npq=4, wsplit=4, qgo=True, pqw=False):
    secs = {}
    cur = [None]
    def sec(n):
        secs[n] = []; cur[0] = secs[n]
    def a(s):
        for l in s.strip().split("\n"):
            cur[0].append(l.strip())
    uid = [0]
    def lab(p):
        uid[0] += 1
        return f"L_{p}{uid[0]}"
    def stamp(k):
        if stamps:
            S = lab("st")
            a(f"s_cbranch_execz {S}\ns_memrealtime s[84:85]\ns_waitcnt lgkmcnt(0)\nv_writelane_b32 v166, s84, {k}\n{S}:")
    def srd(q, ptr, size):
        a(f"s_mov_b32 s{q}, s{ptr}\ns_mov_b32 s{q+1}, s{ptr+1}\ns_mov_b32 s{q+2}, {size:#x}\ns_mov_b32 s{q+3}, 0x00020000")
    P_X, P_K, P_V, P_WQ, P_WO, P_WG, P_WU, P_WD, P_C, P_WM, P_OUT, P_WS = 36, 38, 40, 42, 44, 48, 50, 52, 54, 56, 58, 62
    SA, SB, SW, SC, SD = "s[8:11]", "s[12:15]", "s[16:19]", "s[20:23]", "s[24:27]"
    def pr(r): return f"v[{r}:{r+1}]"
    def pkadd(d, x, y, mod=""): a(f"v_pk_add_f32 {pr(d)}, {pr(x)}, {pr(y)} {mod}")
    def pkmul(d, x, y, mod=""): a(f"v_pk_mul_f32 {pr(d)}, {pr(x)}, {pr(y)} {mod}")
    def add4(d, x, y): pkadd(d, x, y); pkadd(d + 2, x + 2, y + 2)
    def round2(d, s, t):
        a(f"v_cvt_pk_bf16_f32 v{t}, v{s}, v{s+1}\nv_lshlrev_b32 v{d}, 16, v{t}\nv_and_b32 v{d+1}, s70, v{t}")
    def round4(d, s, t):
        a(f"v_cvt_pk_bf16_f32 v{t}, v{s}, v{s+1}\nv_cvt_pk_bf16_f32 v{t+1}, v{s+2}, v{s+3}")
        a(f"v_lshlrev_b32 v{d}, 16, v{t}\nv_and_b32 v{d+1}, s70, v{t}\nv_lshlrev_b32 v{d+2}, 16, v{t+1}\nv_and_b32 v{d+3}, s70, v{t+1}")
    def unpack4(d, s):
        a(f"v_lshlrev_b32 v{d}, 16, v{s}\nv_and_b32 v{d+1}, s70, v{s}\nv_lshlrev_b32 v{d+2}, 16, v{s+1}\nv_and_b32 v{d+3}, s70, v{s+1}")
    def unpack2(d, s):
        a(f"v_lshlrev_b32 v{d}, 16, v{s}\nv_and_b32 v{d+1}, s70, v{s}")
    def tagsetup():
        a("""s_waitcnt lgkmcnt(0)
        s_mul_i32 s68, s83, 1664525
        s_add_u32 s68, s68, 1013904223
        s_and_b32 s64, s68, 0xff
        s_bfe_u32 s65, s68, 0x70009
        s_lshl_b32 s65, s65, 1
        s_andn2_b32 s66, 1, s68
        s_or_b32 s65, s65, s66
        s_bfe_u32 s66, s68, 0x80010
        s_lshr_b32 s67, s68, 24
        v_mov_b32 v8, s64
        v_mov_b32 v9, s65
        v_mov_b32 v10, s66
        v_mov_b32 v11, s67""")
    def decode(regs, t):
        allr = []
        for r in regs:
            for k in range(4):
                a(f"v_xor_b32 v{r+k}, s{64+k}, v{r+k}"); allr.append(r + k)
        a(f"v_or3_b32 v{t}, v{allr[0]}, v{allr[1]}, v{allr[2]}")
        rest = allr[3:]
        while len(rest) >= 2:
            a(f"v_or3_b32 v{t}, v{t}, v{rest[0]}, v{rest[1]}"); rest = rest[2:]
        a(f"v_bitop3_b32 v{t}, v{t}, v{rest[0]}, s69 bitop3:0x54\nv_cmp_ne_u32 vcc, 0, v{t}")
    def poll(loads, regs, t, two=None, pre=None):
        L, D, X = lab("poll"), lab("pdone"), lab("pdec")
        if two: a(f"v_add_u32 v{two[0]}, {LOC if dual else 0}, v{two[1]}")
        a(f"s_mov_b32 s71, {POLL_MAX-1}\ns_cbranch_execz {X}")
        if pre:
            W = lab("pw")
            for l in loads: a(l)
            pre()
            a(f"s_branch {W}")
        a(f"{L}:\ns_cbranch_execz {D}")
        if two and dual: a(f"s_and_b32 s47, s71, {gm}\ns_cselect_b32 s47, {LOC}, 0\nv_add_u32 v{two[0]}, s47, v{two[1]}")
        for l in loads: a(l)
        a(f"s_sub_u32 s71, s71, 1\ns_cbranch_scc1 {D}")
        if pre: a(f"{W}:")
        a(f"s_waitcnt vmcnt(0)\n{X}:")
        decode(regs, t)
        a(f"s_cbranch_vccnz {L}\n{D}:")
    def spoll(items, t, twos=(), pre=None, mid=None, guard=True):
        L, D, X, W = lab("sp"), lab("spd"), lab("spx"), lab("spw")
        for d_, s_ in twos: a(f"v_add_u32 v{d_}, {LOC if dual else 0}, v{s_}")
        a(f"s_mov_b32 s71, {POLL_MAX-1}\ns_mov_b32 s33, {(1 << len(items)) - 1}")
        if guard: a(f"s_cbranch_execz {X}")
        if pre:
            for l, _, _ in items: a(l)
            pre()
            a(f"s_branch {W}")
        a(f"{L}:")
        if guard: a(f"s_cbranch_execz {D}")
        if twos and dual:
            a(f"s_and_b32 s47, s71, {gm}\ns_cselect_b32 s47, {LOC}, 0")
            for d_, s_ in twos: a(f"v_add_u32 v{d_}, s47, v{s_}")
        for j, (l, _, _) in enumerate(items):
            S = lab("sl")
            a(f"s_bitcmp1_b32 s33, {j}\ns_cbranch_scc0 {S}\n{l}\n{S}:")
        a(f"s_sub_u32 s71, s71, 1\ns_cbranch_scc1 {D}\n{W}:\ns_waitcnt vmcnt(0)\n{X}:")
        for j, (_, r, hook) in enumerate(items):
            S = lab("sc")
            a(f"s_bitcmp1_b32 s33, {j}\ns_cbranch_scc0 {S}")
            decode([r], t)
            a(f"s_cbranch_vccnz {S}\ns_bitset0_b32 s33, {j}")
            if hook: hook()
            a(f"{S}:")
        if mid:
            a(f"s_cmp_eq_u32 s33, 0\ns_cbranch_scc1 {D}\ns_cbranch_execz {D}")
            mid()
            a(f"s_branch {L}\n{D}:")
        else:
            a(f"s_cmp_lg_u32 s33, 0\ns_cbranch_scc1 {L}\n{D}:")
    def encode(r, rnd=True):
        for k in range(4):
            if rnd: a(f"v_add_u32 v{r+k}, 0x80, v{r+k}")
        for k in range(4):
            a(f"v_and_or_b32 v{r+k}, v{r+k}, s69, v{8+k}")
    def fold(kind, r, t, n=4, op="v_add_f32"):
        for k in range(n): a(f"v_mov_b32 v{t+k}, v{r+k}")
        for k in range(n): a(f"v_permlane{kind}_swap_b32 v{r+k}, v{t+k}")
        if n == 4 and op == "v_add_f32": add4(r, r, t)
        else:
            for k in range(n): a(f"{op} v{r+k}, v{r+k}, v{t+k}")
    def halve32(r):
        a(f"v_permlane32_swap_b32 v{r}, v{r+2}\nv_permlane32_swap_b32 v{r+1}, v{r+3}")
        pkadd(r, r, r + 2)
    def selsetup():
        a("""v_and_b32 v12, 1, v2
        v_cmp_eq_u32 vcc, 1, v12
        v_mov_b32 v13, 0x0c0c0100
        v_mov_b32 v14, 0x01000c0c
        v_cndmask_b32 v13, v13, v14, vcc
        v_mov_b32 v14, 0x0c0c0302
        v_mov_b32 v15, 0x03020c0c
        v_cndmask_b32 v14, v14, v15, vcc
        v_and_b32 v12, 2, v2
        v_cmp_eq_u32 vcc, 2, v12
        v_mov_b32 v15, 0x0c0c0c0c
        v_cndmask_b32 v4, v13, v15, vcc
        v_cndmask_b32 v5, v15, v13, vcc
        v_cndmask_b32 v6, v14, v15, vcc
        v_cndmask_b32 v7, v15, v14, vcc""")
    def gemv(np_, P, Ws, Ds, AB=32, stride=4, waits=None, first=True):
        def build(m):
            b = AB + 4 * (m % 3)
            for k in range(4): a(f"v_perm_b32 v{b+k}, v{P+m}, v{P+m}, v{4+k}")
        build(0)
        for m in range(np_):
            if m + 1 < np_: build(m + 1)
            b = AB + 4 * (m % 3)
            if waits: a(f"s_waitcnt vmcnt({waits[m]})")
            for W, D in zip(Ws, Ds):
                c = "0" if (m == 0 and first) else f"v[{D}:{D+3}]"
                a(f"v_mfma_f32_16x16x32_bf16 v[{D}:{D+3}], v[{b}:{b+3}], v[{W+stride*m}:{W+stride*m+3}], {c}")
    def silu(n, d, s, t):
        for k in range(n): a(f"v_mul_f32 v{t+k}, 0xbfb8aa3b, v{s+k}")
        for k in range(n): a(f"v_exp_f32 v{t+k}, v{t+k}")
        for k in range(n): a(f"v_add_f32 v{t+k}, 1.0, v{t+k}")
        for k in range(n): a(f"v_rcp_f32 v{t+k}, v{t+k}")
        for k in range(n): a(f"v_mul_f32 v{d+k}, v{s+k}, v{t+k}")
    def barrier_nd():
        S = lab("nb")
        a(f"s_waitcnt lgkmcnt(0)\ns_cbranch_execz {S}\ns_barrier\n{S}:")
    def shuffle(src, wa=58):
        a(f"ds_write_b32 v{wa}, v{src}\nds_read_b128 v[24:27], v59\nds_read_b128 v[28:31], v59 offset:16\ns_waitcnt lgkmcnt(0)")
    def shufsetup():
        a(f"""s_lshl_b32 s28, s3, 9
        s_add_u32 s28, s28, {SH}
        v_and_b32 v58, 31, v0
        v_lshlrev_b32 v58, 3, v58
        v_lshrrev_b32 v59, 5, v0
        v_lshl_add_u32 v58, v59, 2, v58
        v_add_u32 v56, {ST}, v58
        v_and_b32 v56, -8, v56
        v_add_u32 v58, s28, v58
        v_and_b32 v57, 1, v1
        v_lshlrev_b32 v57, 7, v57
        v_lshl_add_u32 v57, v59, 3, v57
        s_lshl_b32 s29, s3, 4
        s_add_u32 s29, s29, {ST}
        v_add_u32 v57, s29, v57
        v_bfe_u32 v59, v2, 2, 1
        v_lshlrev_b32 v59, 7, v59
        v_lshl_add_u32 v59, v1, 5, v59
        v_add_u32 v59, s28, v59""")
    NEGB = "op_sel_hi:[1,0] neg_lo:[0,1] neg_hi:[0,1]"
    def ln2(x, n, t, drysafe=True):
        a(f"v_mov_b32_dpp v{t}, v{x} row_newbcast:0 {DPPM}")
        pkadd(t + 2, x, t, NEGB)
        a(f"v_add_f32 v{t+4}, v{t+2}, v{t+3}\nv_mul_f32 v{t+5}, v{t+2}, v{t+2}\nv_fmac_f32 v{t+5}, v{t+3}, v{t+3}")
        for k in (8, 4, 2, 1):
            a(f"v_add_f32_dpp v{t+4}, v{t+4}, v{t+4} row_ror:{k} {DPPM}\nv_add_f32_dpp v{t+5}, v{t+5}, v{t+5} row_ror:{k} {DPPM}")
        a(f"""v_fmamk_f32 v{t}, v{t+4}, 0x3d000000, v{t}
        v_mul_f32 v{t+4}, v{t+4}, v{t+4}
        v_fmamk_f32 v{t+1}, v{t+4}, 0xbd000000, v{t+5}
        ds_write_b64 v57, {pr(t)}""")
        barrier_nd() if drysafe else a("s_waitcnt lgkmcnt(0)\ns_barrier")
        a(f"""ds_read_b64 {pr(t)}, v56
        s_waitcnt lgkmcnt(0)
        v_mov_b32_dpp v{t+2}, v{t} row_newbcast:0 {DPPM}
        v_sub_f32 v{t+4}, v{t}, v{t+2}
        v_mul_f32 v{t+3}, v{t+4}, v{t+4}
        v_fmamk_f32 v{t+5}, v{t+3}, 0x42000000, v{t+1}""")
        for k in (8, 4, 2, 1):
            a(f"v_add_f32_dpp v{t+4}, v{t+4}, v{t+4} row_ror:{k} {DPPM}\nv_add_f32_dpp v{t+5}, v{t+5}, v{t+5} row_ror:{k} {DPPM}")
        a(f"""v_fmamk_f32 v{t}, v{t+4}, 0x3d800000, v{t+2}
        v_mul_f32 v{t+4}, v{t+4}, v{t+4}
        v_fmamk_f32 v{t+1}, v{t+4}, 0xc0000000, v{t+5}
        v_mul_f32 v{t+1}, 0x3b000000, v{t+1}
        v_max_f32 v{t+1}, 0, v{t+1}""")
        ln_tail(x, n, t)
    def ln_tail(x, n, t):
        round2(t, t, t + 2)
        a(f"v_add_f32 v{t+2}, 0x3727c5ac, v{t+1}")
        pkadd(n, x, t, NEGB)
        a(f"v_cvt_pk_bf16_f32 v{t+2}, v{t+2}, v{t+2}\nv_cvt_pk_bf16_f32 v{t+3}, v{n}, v{n+1}\nv_and_b32 v{t+2}, s70, v{t+2}\nv_sqrt_f32 v{t+2}, v{t+2}")
        unpack2(n, t + 3)
        a(f"v_cvt_pk_bf16_f32 v{t+2}, v{t+2}, v{t+2}\nv_and_b32 v{t+2}, s70, v{t+2}\nv_rcp_f32 v{t+2}, v{t+2}")
        pkmul(n, n, t + 2, "op_sel_hi:[1,0]")
        round2(n, n, t + 3)
    def ln_full(raw, u, x, n, t):
        for k in range(8): unpack2(u + 2 * k, raw + k)
        def red(src, d):
            for st in (8, 4, 2):
                for k in range(0, st, 2): pkadd(raw + k, src + k, src + st + k)
                src = raw
            a(f"v_add_f32 v{d}, v{raw}, v{raw+1}")
            for k in (8, 4, 2, 1): a(f"v_add_f32_dpp v{d}, v{d}, v{d} row_ror:{k} {DPPM}")
            fold(32, d, t + 4, 1)
            a(f"v_mul_f32 v{d}, 0x3b000000, v{d}")
        red(u, t)
        for k in range(8): pkadd(u + 2 * k, u + 2 * k, t, NEGB)
        for k in range(8): pkmul(u + 2 * k, u + 2 * k, u + 2 * k)
        red(u, t + 1)
        ln_tail(x, n, t)
    def wloads(reg, n, vo, srdq, sbase, steps, w=4):
        for m in range(n):
            a(f"s_add_u32 s29, {sbase}, {steps[m]}")
            a(f"buffer_load_dwordx{w} v[{reg+w*m}:{reg+w*m+w-1}], {vo}, {srdq}, s29 offen {nt}")
    def fix64(base, t, after=None, n=8):
        for m in range(n):
            if after is not None: a(f"s_waitcnt vmcnt({after + n - 1 - m})")
            r = base + 4 * m
            a(f"v_mov_b32 v{t}, v{r}\nv_mov_b32 v{t+1}, v{r+1}")
            a(f"v_mov_b32_dpp v{r}, v{r+2} row_ror:8 row_mask:0xf bank_mask:0xc\nv_mov_b32_dpp v{r+1}, v{r+3} row_ror:8 row_mask:0xf bank_mask:0xc")
            a(f"v_mov_b32_dpp v{r+2}, v{t} row_ror:8 row_mask:0xf bank_mask:0x3\nv_mov_b32_dpp v{r+3}, v{t+1} row_ror:8 row_mask:0xf bank_mask:0x3")
    def fix128(base):
        for m in range(8):
            r = base + 8 * m
            a(f"v_swap_b32 v{r+2}, v{r+4}\nv_swap_b32 v{r+3}, v{r+5}")
    def vo64(dst, rowbytes, t):
        a(f"""v_lshrrev_b32 v{t}, 3, v2
        v_lshl_add_u32 v{t}, v1, 4, v{t}
        v_mul_u32_u24 v{t}, {rowbytes}, v{t}
        v_and_b32 v{dst}, 7, v2
        v_lshl_add_u32 v{dst}, v{dst}, 4, v{t}""")

    sec('entry')
    a(f"""s_cmp_ge_u32 s2, 256
    s_cbranch_scc1 L_exit
    s_load_dwordx16 s[36:51], s[0:1], 0
    s_load_dwordx8 s[52:59], s[0:1], 64
    s_load_dwordx4 s[60:63], s[0:1], 96""")
    if stamps:
        a("s_memrealtime s[86:87]\nv_mov_b32 v166, 0")
    a(f"""v_lshrrev_b32 v1, 6, v0
    v_and_b32 v0, 63, v0
    v_readfirstlane_b32 s3, v1
    v_lshrrev_b32 v1, 4, v0
    v_and_b32 v2, 15, v0
    v_lshlrev_b32 v3, 4, v0
    s_and_b32 s4, s2, 7
    s_lshr_b32 s5, s2, 3
    s_mov_b32 s69, 0xffffff00
    s_mov_b32 s70, 0xffff0000
    s_cmp_lg_u32 s3, 2
    s_cbranch_scc1 L_nopf
    s_getpc_b64 s[28:29]
    L_pc:
    s_min_u32 s30, s5, (L_exit-L_pc)/1024-1
    s_lshl_b32 s30, s30, 10
    s_add_u32 s30, s30, (L_exit-L_pc)&0x3f0
    v_add_u32 v12, s30, v3
    global_load_dwordx4 v[160:163], v12, s[28:29]
    L_nopf:
    s_cmp_lt_u32 s5, 8
    s_cbranch_scc1 L_W
    s_and_b32 s6, s5, 1
    s_sub_u32 s7, s5, 8
    s_lshr_b32 s7, s7, 1
    s_mul_i32 s28, s7, 10
    s_min_u32 s29, s7, 8
    s_add_u32 s28, s28, s29
    s_lshl_b32 s28, s28, 13
    s_lshl_b32 s29, s6, 3
    s_add_u32 s29, s29, s4
    s_lshl_b32 s29, s29, 23
    s_add_u32 s28, s28, s29
    s_add_u32 s28, s28, 0x700000
    s_cmp_lt_u32 s7, 8
    s_cselect_b32 s35, 11, 10
    s_cmp_gt_u32 s3, 1
    s_cbranch_scc1 L_T
    s_cmp_eq_u32 s3, 1
    s_cbranch_scc1 L_X
    v_lshlrev_b32 v12, 2, v1
    v_xor_b32 v12, v12, v2
    v_lshlrev_b32 v12, 4, v12
    v_lshl_add_u32 v4, v1, 8, v12
    v_xor_b32 v5, 16, v4
    v_xor_b32 v6, 32, v4
    v_xor_b32 v7, 48, v4
    s_mov_b32 s31, {KT}
    s_mov_b32 s32, 3
    s_mov_b32 s30, {2*t1-3}
    s_lshl_b32 s33, s35, 1
    s_sub_u32 s33, s33, {2*t1}
    s_setprio 3
    s_waitcnt lgkmcnt(0)
    s_load_dword s83, s[62:63], 0""")
    if stamps: a("s_mov_b32 s46, s3")
    srd(8, P_K, 0x8000000)
    srd(12, P_WQ, 512 * 8192)
    a(f"""s_cmp_eq_u32 s35, 10
    s_cbranch_scc1 L_k0
    s_sub_u32 s29, s5, 8
    s_lshl_b32 s29, s29, 18
    s_lshl_b32 s34, s4, 10
    s_add_u32 s29, s29, s34
    v_lshrrev_b32 v12, 3, v0
    v_and_b32 v13, 7, v0
    v_lshlrev_b32 v13, 7, v13
    v_lshl_add_u32 v12, v12, 13, v13""")
    for k in range(npq):
        a(f"buffer_load_dword v161, v12, {SB}, s29 offen\ns_add_u32 s29, s29, 65536")
    if pqw:
        stamp(5)
        a("s_waitcnt vmcnt(0)")
        stamp(2)
    for nm, cnt, win in (("L_k0", "s32", 63), ("L_k1", "s30", win1), ("L_k2", "s33", win2)):
        a(f"{nm}:\ns_mov_b32 m0, s31\ns_add_u32 s31, s31, 4096")
        for j in range(4):
            a(f"buffer_load_dwordx4 v{4+j}, {SA}, s28 offen offset:{j*1024} {nt} lds")
            if win < 63 and j & 1: a(f"s_waitcnt vmcnt({win-2})")
        a(f"s_add_u32 s28, s28, 4096\ns_sub_u32 {cnt}, {cnt}, 1\ns_cmp_lg_u32 {cnt}, 0\ns_cbranch_scc1 {nm}")
        if nm == "L_k0": a("s_barrier")
        if nm == "L_k1":
            a(f"v_mov_b32 v30, {FLG}\nds_write_b32 v30, v30 offset:{QGO}")
            srd(12, P_WO, 4096 * 1024); srd(20, P_WM, 512 * 6144)
            a(f"""s_sub_u32 s32, s5, 8
            s_mul_i32 s29, s32, {22*1024}
            s_min_u32 s29, s29, {(512-24)*1024}
            s_lshl_b32 s30, s4, 19
            s_add_u32 s29, s29, s30
            v_lshlrev_b32 v27, 7, v0""")
            for k in range(npo): a(f"s_waitcnt vmcnt({max(0, min(win1, 32) - 8*(k+1)) + k})\nbuffer_load_dword v161, v27, {SB}, s29 offen\ns_add_u32 s29, s29, 8192")
            if pml: a(f"""s_mul_i32 s29, s32, 22
            s_min_u32 s29, s29, {512-22}
            s_mul_i32 s29, s29, 6144
            s_lshl_b32 s30, s4, 7
            s_add_u32 s29, s29, s30
            s_add_u32 s29, s29, 2048
            v_lshrrev_b32 v27, 2, v0
            v_min_u32 v12, 5, v27
            v_mul_u32_u24 v27, 6144, v27
            v_mul_u32_u24 v12, 6144, v12
            v_and_b32 v13, 3, v0
            v_lshl_add_u32 v27, v13, 10, v27
            v_lshl_add_u32 v12, v13, 10, v12
            s_add_u32 s30, s29, {16*6144}
            buffer_load_dword v161, v27, {SC}, s29 offen
            buffer_load_dword v161, v12, {SC}, s30 offen""")
    a(f"v_mov_b32 v30, {FLG}")
    for d in range(vd):
        if d and vx < 8: a(f"s_waitcnt vmcnt({max(0, min(win2, 32) - 8*d)})")
        a(f"ds_write_b32 v30, v30 offset:{TOK+4*d}")
    a(f"s_waitcnt vmcnt(0)\nds_write_b32 v30, v30 offset:{KRDY}")
    a("s_branch L_H0")
    sec('H')
    a("L_H0:")
    stamp(1)
    srd(16, P_WS, WS_BYTES)
    tagsetup()
    a(f"""s_mov_b32 s34, 0x07060302
    v_and_b32 v12, 3, v2
    v_lshrrev_b32 v13, 2, v2
    v_lshlrev_b32 v14, 3, v0
    v_mul_u32_u24 v25, 48, v13
    v_lshl_add_u32 v27, v1, 2, v12
    v_lshl_add_u32 v27, v13, 5, v27
    v_lshlrev_b32 v27, 4, v27
    v_lshlrev_b32 v28, 4, v13
    v_min_u32 v26, 10, v0
    v_lshlrev_b32 v26, 2, v26
    v_add_u32 v29, {KT}, v3
    v_add_u32 v31, {KT+7*8192}, v3
    v_mov_b32 v22, {LOG2E}
    s_mul_i32 s72, s4, 24
    s_mul_i32 s73, s6, 12
    s_add_u32 s72, s72, s73
    s_add_u32 s72, s72, s7
    s_lshl_b32 s73, s72, 11
    s_add_u32 s73, s73, {HA}
    s_lshl_b32 s72, s72, 7
    s_add_u32 s72, s72, {HML}
    s_add_u32 s74, s72, {LOC}
    s_add_u32 s75, s73, {LOC}""")
    if dry: a("s_mov_b64 exec, 0")
    a("L_H:")
    a(f"""L_f1:
    ds_read_b32 v16, v26 offset:{FLG+FL1}""")
    for k in range(3): a(f"ds_read_b128 v[{32+4*k}:{35+4*k}], v25 offset:{MX+16*k}")
    for k in range(3): a(f"ds_read_b128 v[{88+4*k}:{91+4*k}], v25 offset:{LS+16*k}")
    a("""s_waitcnt lgkmcnt(0)
    v_cmp_eq_u32 vcc, 0, v16
    s_cbranch_vccz L_f1d
    s_sleep 1
    s_branch L_f1
    L_f1d:""")
    stamp(3)
    a("""v_max3_f32 v16, v32, v33, v34
    v_max3_f32 v17, v35, v36, v37
    v_max3_f32 v18, v38, v39, v40
    v_max3_f32 v16, v16, v41, v42
    v_max3_f32 v16, v16, v17, v18""")
    for k in range(6): pkadd(32 + 2 * k, 32 + 2 * k, 16, NEGB)
    for k in range(6): pkmul(32 + 2 * k, 32 + 2 * k, 22, "op_sel_hi:[1,0]")
    for k in range(11): a(f"v_exp_f32 v{32+k}, v{32+k}")
    pkmul(18, 32, 88)
    for k in range(1, 5): a(f"v_pk_fma_f32 v[18:19], {pr(32+2*k)}, {pr(88+2*k)}, v[18:19]")
    a("""v_add_f32 v17, v18, v19
    v_fmac_f32 v17, v42, v98
    v_mov_b32 v18, 0
    v_mov_b32 v19, 0""")
    encode(16)
    a(f"""s_cbranch_execz L_col
    s_mov_b64 exec, 0x1111""")
    if dual: a(f"buffer_store_dwordx4 v[16:19], v28, {SW}, s74 offen")
    a(f"""buffer_store_dwordx4 v[16:19], v28, {SW}, s72 offen sc1
    s_mov_b64 exec, -1""")
    stamp(4)
    a("L_col:")
    if stamps: a("s_waitcnt lgkmcnt(0)")
    def colrd(t):
        r = 64 + 12 * (t & 1)
        base, off = ("v29", t * 8192) if t < 7 else ("v31", (t - 7) * 8192)
        a(f"ds_read_b32 v{r+8}, v30 offset:{4*t}\nds_read_b128 v[{r}:{r+3}], {base} offset:{off}\nds_read_b128 v[{r+4}:{r+7}], {base} offset:{off+1024}")
    colrd(0)
    for t in range(11):
        r = 64 + 12 * (t & 1)
        if t < 10:
            colrd(t + 1); a("s_waitcnt lgkmcnt(3)")
        else:
            a("s_waitcnt lgkmcnt(0)")
        a(f"L_cchk{t}:\nv_cmp_eq_u32 vcc, 0, v{r+8}\ns_cbranch_vccz L_cadd{t}")
        colrd(t)
        a(f"s_waitcnt lgkmcnt(0)\ns_branch L_cchk{t}\nL_cadd{t}:")
        for k in range(4):
            sc = pr(32 + (t & ~1))
            if t == 0: a(f"v_pk_mul_f32 {pr(48+2*k)}, {pr(r+2*k)}, {sc} op_sel_hi:[1,0]")
            else: a(f"v_pk_fma_f32 {pr(48+2*k)}, {pr(r+2*k)}, {sc}, {pr(48+2*k)} " + ("op_sel:[0,1,0] op_sel_hi:[1,1,1]" if t & 1 else "op_sel_hi:[1,0,1]"))
    encode(48); encode(52)
    a("s_cbranch_execz L_dryH")
    if dual: a(f"buffer_store_dwordx4 v[48:51], v27, {SW}, s75 offen\nbuffer_store_dwordx4 v[52:55], v27, {SW}, s75 offen offset:256")
    a(f"""buffer_store_dwordx4 v[48:51], v27, {SW}, s73 offen sc1
    buffer_store_dwordx4 v[52:55], v27, {SW}, s73 offen offset:256 sc1
    ds_write_b32 v30, v30 offset:{OST}
    s_waitcnt lgkmcnt(0)""")
    stamp(6)
    a("s_branch L_end\nL_dryH:\ns_mov_b64 exec, -1\ns_branch L_H")

    def spin(off, areg, t, sl=1):
        L, D = lab("sp"), lab("spd")
        a(f"""{L}:
        ds_read_b32 v{t}, v{areg} offset:{off}
        s_waitcnt lgkmcnt(0)
        v_cmp_eq_u32 vcc, 0, v{t}
        s_cbranch_vccz {D}
        s_sleep {sl}
        s_branch {L}
        {D}:""")
    sec('T')
    a(f"""L_T:
    s_sub_u32 s3, s3, 2
    v_lshrrev_b32 v13, 2, v2
    v_mul_u32_u24 v25, 48, v13
    s_lshl_b32 s29, s3, 2
    v_add_u32 v26, s29, v25
    v_mov_b32 v30, s29
    v_mov_b32 v16, 0
    v_mov_b32 v17, 0
    v_mov_b32 v18, 0
    v_mov_b32 v19, 0
    v_mov_b32 v28, {FLG}
    ds_write_b32 v30, v16 offset:{FLG}
    ds_write_b32 v30, v16 offset:{FLG+FL1}
    ds_write_b32 v30, v16 offset:{FLG+TOK}
    ds_write_b32 v30, v16 offset:{FLG+TOK+4}
    ds_write_b128 v28, v[16:19] offset:{KRDY}
    s_lshl_b32 s31, s3, 13
    s_add_u32 s28, s28, s31
    s_add_u32 s30, s28, 4096
    s_add_u32 s31, s31, {KT}
    s_mov_b32 s74, 0x11111111
    s_mov_b32 s75, 0x11111111
    s_mov_b32 s76, 0x22222222
    s_mov_b32 s77, 0x22222222
    s_mov_b32 s78, 0x44444444
    s_mov_b32 s79, 0x44444444
    s_mov_b32 s80, 0x88888888
    s_mov_b32 s81, 0x88888888
    s_mov_b32 s33, 0x05040100
    s_mov_b32 s34, 0x07060302
    v_and_b32 v12, 3, v2
    v_lshl_add_u32 v14, v12, 2, v13
    v_lshlrev_b32 v14, 8, v14
    v_xor_b32 v15, v1, v2
    v_lshl_add_u32 v14, v15, 4, v14
    v_add_u32 v4, s31, v14
    v_xor_b32 v5, 64, v4
    v_xor_b32 v6, 0x80, v4
    v_xor_b32 v7, 0xc0, v4
    v_lshlrev_b32 v15, 8, v13
    v_lshl_add_u32 v15, v1, 4, v15
    v_add_u32 v29, s31, v3
    v_mov_b32 v31, 1
    v_mov_b32 v20, 0x3db504f3
    v_mov_b32 v22, {LOG2E}
    s_waitcnt lgkmcnt(0)
    s_barrier""")
    if stamps: a("s_add_u32 s46, s3, 1")
    srd(12, P_V, 0x8000000)
    a("s_load_dword s83, s[62:63], 0")
    srd(16, P_WS, WS_BYTES)
    a(f"""s_lshl_b32 s32, s4, 1
    s_add_u32 s32, s32, s6
    s_lshl_b32 s32, s32, 11
    s_add_u32 s32, s32, {HQ}
    v_lshlrev_b32 v14, 3, v0""")
    tagsetup()
    a(f"s_cmp_lt_u32 s3, {qp[0]}\ns_cbranch_scc1 L_nq\ns_cmp_gt_u32 s3, {qp[1]}\ns_cbranch_scc1 L_nq")
    if qgo: spin(QGO, 28, 16, 2)
    poll([f"buffer_load_dwordx4 v[144:147], v27, {SW}, s32 offen sc1", f"buffer_load_dwordx4 v[148:151], v27, {SW}, s32 offen offset:1024 sc1"], [144, 148], 16, two=(27, 3))
    stamp(7)
    a(f"""v_perm_b32 v16, v145, v144, s34
    v_perm_b32 v17, v147, v146, s34
    v_perm_b32 v18, v149, v148, s34
    v_perm_b32 v19, v151, v150, s34
    ds_write_b64 v14, v[16:17] offset:{QL}
    ds_write_b64 v14, v[18:19] offset:{QL+512}
    ds_write_b32 v28, v28 offset:{QRDY}""")
    a("L_nq:")
    if dry: a("s_cmp_lg_u32 s3, 5\ns_cbranch_scc1 L_att\ns_mov_b64 exec, 0")
    a(f"""L_att:
    s_mov_b32 s72, 0
    s_cbranch_execz L_k
    s_setprio 2
    L_ev:
    ds_read_b32 v16, v30 offset:{FLG+TOK}
    ds_read_b64 v[18:19], v28 offset:{KRDY}
    s_waitcnt lgkmcnt(0)
    s_bitcmp1_b32 s72, 0
    s_cbranch_scc1 L_ev1
    v_cmp_ne_u32 vcc, 0, v16
    s_cbranch_vccnz L_v
    L_ev1:
    s_bitcmp1_b32 s72, 1
    s_cbranch_scc1 L_ev2
    v_cmp_ne_u32 vcc, 0, v18
    s_cbranch_vccnz L_k
    s_branch L_ev3
    L_ev2:
    s_bitcmp1_b32 s72, 2
    s_cbranch_scc1 L_ev3
    v_cmp_ne_u32 vcc, 0, v19
    s_cbranch_vccnz L_sc
    L_ev3:
    s_sleep {evs}
    s_branch L_ev
    L_v:""")
    for j in range(8):
        a(f"buffer_load_dwordx4 v[{32+4*j}:{35+4*j}], v3, {SB}, {'s28' if j < 4 else 's30'} offen offset:{(j&3)*1024} {nt}")
    stamp(1)
    a(f"""s_add_u32 s29, s3, {vd}
    s_cmp_gt_u32 s29, s35
    s_cbranch_scc1 L_v2
    s_waitcnt vmcnt({vx})
    ds_write_b32 v30, v31 offset:{FLG+TOK+4*vd}
    L_v2:
    s_bitcmp1_b32 s72, 2
    s_cbranch_scc1 L_pv
    s_bitset1_b32 s72, 0
    s_setprio 0
    s_branch L_ev
    L_k:""")
    for i in range(4):
        for t in range(2):
            a(f"ds_read_b128 v[{96+16*t+4*i}:{99+16*t+4*i}], v{4+i} offset:{t*4096}")
    stamp(2)
    a("s_bitset1_b32 s72, 1\ns_cbranch_execnz L_ev\nL_sc:")
    stamp(3)
    for i in range(4):
        a(f"ds_read_b128 v[{128+4*i}:{131+4*i}], v15 offset:{QL+64*i}")
    for i in range(4):
        a(f"s_waitcnt lgkmcnt({0 if stamps else 3-i})")
        for t in range(2):
            c = "0" if i == 0 else f"v[{152+4*t}:{155+4*t}]"
            a(f"v_mfma_f32_16x16x32_bf16 v[{152+4*t}:{155+4*t}], v[{96+16*t+4*i}:{99+16*t+4*i}], v[{128+4*i}:{131+4*i}], {c}")
    round4(152, 152, 16); round4(156, 156, 18)
    for k in range(4): pkmul(152 + 2 * k, 152 + 2 * k, 20, "op_sel_hi:[1,0]")
    round4(152, 152, 16); round4(156, 156, 18)
    a("""v_max3_f32 v16, v152, v153, v154
    v_max3_f32 v17, v155, v156, v157
    v_max3_f32 v16, v16, v158, v159
    v_max_f32 v16, v16, v17""")
    fold(16, 16, 17, 1, "v_max_f32"); fold(32, 16, 17, 1, "v_max_f32")
    a(f"ds_write_b32 v26, v16 offset:{MX}")
    for k in range(4): pkadd(152 + 2 * k, 152 + 2 * k, 16, NEGB)
    for k in range(4): pkmul(152 + 2 * k, 152 + 2 * k, 22, "op_sel_hi:[1,0]")
    for k in range(8): a(f"v_exp_f32 v{152+k}, v{152+k}")
    add4(96, 152, 156); pkadd(96, 96, 98)
    a("v_add_f32 v17, v96, v97")
    fold(16, 17, 18, 1); fold(32, 17, 18, 1)
    a(f"ds_write_b32 v26, v17 offset:{LS}\nds_write_b32 v30, v31 offset:{FLG+FL1}")
    for k in range(4): a(f"v_cvt_pk_bf16_f32 v{96+k}, v{152+2*k}, v{153+2*k}")
    for s in range(4):
        for k in range(4): a(f"v_cndmask_b32 v{128+4*s+k}, 0, v{96+k}, s[{74+2*s}:{75+2*s}]")
    stamp(4)
    a("""s_cbranch_execz L_pv
    s_bitset1_b32 s72, 2
    s_bitcmp1_b32 s72, 0
    s_cbranch_scc0 L_ev
    L_pv:""")
    for p in range(4):
        a(f"s_waitcnt vmcnt({6-2*p})")
        if p == 3: stamp(5)
        for i in range(8):
            a(f"v_perm_b32 v{64+4*i+p}, v{32+4*(2*p+1)+(i>>1)}, v{32+4*(2*p)+(i>>1)}, {'s34' if i & 1 else 's33'}")
    for aa in range(2):
        for s in range(4):
            i = 2 * s + aa
            c = "0" if s == 0 else f"v[{152+4*aa}:{155+4*aa}]"
            a(f"v_mfma_f32_16x16x32_bf16 v[{152+4*aa}:{155+4*aa}], v[{64+4*i}:{67+4*i}], v[{128+4*s}:{131+4*s}], {c}")
    a(f"""ds_write_b128 v29, v[152:155]
    ds_write_b128 v29, v[156:159] offset:1024
    ds_write_b32 v30, v31 offset:{FLG}
    s_waitcnt lgkmcnt(0)""")
    stamp(6)
    a(f"""s_cbranch_execnz L_pf
    s_mov_b64 exec, -1
    s_branch L_att
    L_pf:""")
    if pff:
        a(f"""s_cmp_lg_u32 s3, 0
        s_cbranch_scc1 L_F0
        s_sub_u32 s28, s5, 8
        s_and_b32 s29, s28, 7
        s_lshl_b32 s30, s35, 2
        v_mov_b32 v30, s30
        s_cmp_ge_u32 s28, 16
        s_cbranch_scc1 L_pfd
        s_cmp_lt_u32 s28, 8
        s_cselect_b32 s20, s{P_WG}, s{P_WU}
        s_cselect_b32 s21, s{P_WG+1}, s{P_WU+1}
        s_mov_b32 s22, {512*3584}
        s_cmp_lt_u32 s4, 4
        s_cselect_b32 s31, 3, 2
        v_and_b32 v14, 3, v0
        v_min_u32 v14, s31, v14
        v_lshrrev_b32 v13, 2, v0
        v_mul_u32_u24 v13, 3584, v13
        v_lshl_add_u32 v13, v14, 10, v13
        s_mul_i32 s30, s29, {64*3584}
        s_lshl_b32 s31, s4, 7
        s_add_u32 s30, s30, s31
        s_mov_b32 s31, {16*3584}
        s_branch L_pfg
        L_pfd:
        s_mov_b32 s20, s{P_WD}
        s_mov_b32 s21, s{P_WD+1}
        s_mov_b32 s22, {1792*1024}
        v_lshlrev_b32 v13, 7, v0
        s_lshr_b32 s30, s29, 1
        s_lshl_b32 s30, s30, 3
        s_add_u32 s30, s30, s4
        s_lshl_b32 s30, s30, 1
        s_and_b32 s29, s29, 1
        s_add_u32 s30, s30, s29
        s_lshl_b32 s30, s30, 15
        s_mov_b32 s31, 8192
        L_pfg:
        s_mov_b32 s23, 0x00020000""")
        spin(FLG + TOK - 4 * pk, 30, 16)
        for k in range(4):
            a(f"buffer_load_dword v161, v13, {SC}, s30 offen\ns_add_u32 s30, s30, s31")
            if k == 1: a("s_waitcnt vmcnt(1)")
        if stamps: a("s_waitcnt vmcnt(0)")
        stamp(7)
    a("s_branch L_F0")


    sec('Me')
    a(f"""L_X:
    s_mov_b32 s3, 12
    s_cmp_eq_u32 s35, 11
    s_cbranch_scc1 L_T
    s_setprio 3
    s_sub_u32 s33, s2, 192
    s_and_b32 s6, s33, 15
    s_lshr_b32 s7, s33, 4
    v_lshlrev_b32 v12, 3, v2
    v_and_b32 v13, 1, v1
    v_lshl_add_u32 v13, v13, 10, v12
    v_lshrrev_b32 v14, 5, v0
    v_lshl_add_u32 v61, v14, 7, v13
    s_lshl_b32 s28, s7, 8
    v_mul_u32_u24 v14, {16*6144}, v1
    v_add_u32 v14, v14, v12
    s_mul_i32 s30, s7, {128*6144}
    s_lshl_b32 s31, s6, 7
    s_add_u32 s30, s30, s31
    s_waitcnt lgkmcnt(0)
    s_load_dword s83, s[62:63], 0""")
    if stamps: a("s_mov_b32 s46, 11")
    srd(20, P_C, 2048); srd(8, P_WM, 512 * 6144)
    a(f"buffer_load_dwordx2 v[52:53], v61, {SC}, s28 offen")
    wloads(64, 32, "v14", SA, "s30", [((jj >> 4) * 64 + (jj & 15)) * 6144 for jj in range(32)], w=2)
    a(f"""v_lshrrev_b32 v13, 2, v2
    v_mul_u32_u24 v25, 48, v13
    v_mov_b32 v16, 0
    v_mov_b32 v17, 0
    v_mov_b32 v18, 0
    v_mov_b32 v19, 0
    v_mov_b32 v20, 0xff800000
    v_add_u32 v29, {KT+10*8192}, v3
    v_mov_b32 v63, {FLG}
    ds_write_b32 v25, v20 offset:{MX+40}
    ds_write_b32 v25, v16 offset:{LS+40}
    ds_write_b128 v29, v[16:19]
    ds_write_b128 v29, v[16:19] offset:1024
    ds_write_b32 v63, v63 offset:40
    ds_write_b32 v63, v63 offset:{FL1+40}
    s_waitcnt lgkmcnt(0)
    s_barrier""")
    stamp(1)
    srd(16, P_WS, WS_BYTES)
    selsetup(); tagsetup()
    a(f"""v_and_b32 v60, 31, v0
    v_lshlrev_b32 v60, 4, v60
    s_lshl_b32 s73, s6, 2
    s_add_u32 s73, s73, s7
    s_lshl_b32 s73, s73, 9
    s_add_u32 s73, s73, {HM_E}
    v_lshlrev_b32 v58, 3, v0
    v_bfe_u32 v59, v2, 2, 1
    v_lshlrev_b32 v59, 7, v59
    v_lshl_add_u32 v59, v1, 5, v59
    s_waitcnt vmcnt(32)""")
    unpack4(32, 52)
    silu(4, 32, 32, 36)
    a(f"""v_cvt_pk_bf16_f32 v56, v32, v33
    v_cvt_pk_bf16_f32 v57, v34, v35
    ds_write_b64 v58, v[56:57] offset:{SH+4096}
    ds_read_b128 v[16:19], v59 offset:{SH+4096}
    ds_read_b128 v[20:23], v59 offset:{SH+4096+16}
    ds_read_b128 v[24:27], v59 offset:{SH+4096+256}
    ds_read_b128 v[28:31], v59 offset:{SH+4096+272}
    s_waitcnt lgkmcnt(0)""")
    gemv(16, 16, [64], [44], waits=[30 - 2 * m for m in range(16)])
    encode(44)
    a(f"""s_mov_b32 exec_hi, 0
    buffer_store_dwordx4 v[44:47], v60, {SW}, s73 offen sc1
    s_mov_b32 exec_hi, -1""")
    stamp(2)
    a("s_branch L_X2")

    sec('W')
    a(f"""L_W:
    s_cmp_ge_u32 s3, 8
    s_cbranch_scc1 L_Wx
    v_lshlrev_b32 v12, 3, v2
    v_and_b32 v14, 1, v1
    v_lshl_add_u32 v12, v14, 10, v12
    v_lshrrev_b32 v15, 5, v0
    v_lshl_add_u32 v12, v15, 2, v12
    s_lshl_b32 s32, s3, 7
    v_lshlrev_b32 v14, 10, v14
    v_lshl_add_u32 v14, v15, 9, v14
    v_lshl_add_u32 v14, v2, 5, v14
    v_and_b32 v60, 31, v0
    v_lshlrev_b32 v53, 1, v60
    v_lshl_add_u32 v13, v15, 10, v53
    s_lshr_b32 s7, s5, 2
    s_lshl_b32 s7, s7, 8
    s_lshl_b32 s29, s3, 5
    s_add_u32 s7, s7, s29
    s_lshl_b32 s29, s7, 1
    s_waitcnt lgkmcnt(0)
    s_load_dword s83, s[62:63], 0""")
    if stamps: a("s_mov_b32 s46, s3")
    srd(24, P_X, 2048); srd(20, P_C, 2048)
    a(f"""buffer_load_dword v54, v12, {SD}, s32 offen
    buffer_load_dwordx4 v[112:115], v14, {SD}, 0 offen
    buffer_load_dwordx4 v[116:119], v14, {SD}, 0 offen offset:16
    buffer_load_ushort v55, v13, {SC}, s29 offen
    v_lshl_add_u32 v53, v15, 6, v53""")
    srd(12, P_WQ, 512 * 8192)
    vo64(52, 8192, 14)
    a("""s_lshl_b32 s31, s3, 19
    s_lshl_b32 s29, s4, 10
    s_add_u32 s31, s31, s29
    s_lshl_b32 s29, s5, 7
    s_add_u32 s31, s31, s29""")
    a(f"s_cmp_ge_u32 s3, {wsplit}\ns_cbranch_scc1 L_nw1")
    wloads(64, 8, "v52", SB, "s31", [2 * m * 8192 for m in range(8)])
    a("L_nw1:")
    srd(16, P_WS, WS_BYTES)
    selsetup(); shufsetup()
    a(f"""v_add_u32 v53, s28, v53
    v_lshlrev_b32 v60, 4, v60
    s_lshl_b32 s29, s3, 9
    v_add_u32 v20, s29, v60
    v_lshrrev_b32 v61, 5, v0
    v_lshl_add_u32 v61, v61, 14, v60
    s_lshl_b32 s30, s3, 11
    s_add_u32 s30, s30, {HM_E}""")
    tagsetup()
    a(f"s_waitcnt vmcnt(8)\ns_cmp_lt_u32 s3, {wsplit}\ns_cbranch_scc1 L_nw2\ns_waitcnt vmcnt(0)\nL_nw2:")
    unpack2(164, 54)
    ln_full(112, 120, 164, 16, 36)
    stamp(5)
    a(f"s_cmp_lt_u32 s3, {wsplit}\ns_cbranch_scc1 L_nw3")
    wloads(64, 8, "v52", SB, "s31", [2 * m * 8192 for m in range(8)])
    a("L_nw3:\ns_barrier\nL_Q:")
    def preq():
        a("v_lshlrev_b32 v32, 16, v55")
        silu(1, 32, 32, 36)
        a("v_cvt_pk_bf16_f32 v32, v32, v32\nds_write_b16 v53, v32 offset:256")
        fix64(64, 36, after=4); stamp(2)
    spoll([(f"buffer_load_dwordx4 v[{96+4*k}:{99+4*k}], v61, {SW}, s30 offen offset:{512*k} sc1", 96 + 4 * k, None) for k in range(4)], 32, pre=preq)
    stamp(3)
    add4(96, 96, 100); add4(104, 104, 108); add4(96, 96, 104)
    a("v_permlane32_swap_b32 v96, v98\nv_permlane32_swap_b32 v97, v99")
    round4(96, 96, 36)
    a("v_pk_add_f32 v[98:99], v[98:99], 1.0 op_sel_hi:[1,0]")
    round2(98, 98, 36)
    pkmul(98, 98, 16)
    round2(98, 98, 36)
    pkadd(98, 98, 96)
    a("v_cvt_pk_bf16_f32 v55, v98, v99")
    shuffle(55)
    gemv(8, 24, [64], [44])
    a(f"ds_write_b128 v20, v[44:47] offset:{RED}")
    barrier_nd()
    a("s_cbranch_execz L_exit")
    srd(8, P_WM, 512 * 6144); srd(12, P_WO, 4096 * 1024)
    a(f"""s_mul_i32 s30, s7, 6144
    s_and_b32 s28, s5, 3
    s_lshl_b32 s29, s28, 10
    s_add_u32 s30, s30, s29
    s_lshl_b32 s29, s4, 7
    s_add_u32 s30, s30, s29
    s_add_u32 s30, s30, 2048
    v_lshrrev_b32 v12, 3, v2
    v_lshl_add_u32 v14, v1, 3, v12
    v_mul_u32_u24 v14, 6144, v14
    v_and_b32 v15, 7, v2
    v_lshlrev_b32 v15, 4, v15
    v_add_u32 v14, v14, v15
    v_lshl_add_u32 v13, v1, 2, v12
    v_lshl_add_u32 v13, v13, 13, v15
    s_lshl_b32 s31, s4, 9
    s_lshr_b32 s28, s3, 1
    s_lshl_b32 s29, s28, 7
    s_add_u32 s31, s31, s29
    s_and_b32 s29, s3, 1
    s_add_u32 s31, s31, s29
    s_lshl_b32 s31, s31, 10
    s_lshl_b32 s29, s5, 7
    s_add_u32 s31, s31, s29
    s_barrier""")
    wloads(128, 4, "v14", SA, "s30", [2 * m * 6144 for m in range(4)])
    wloads(64, 8, "v13", SB, "s31", [(16 * (m & 1) + 2 * (m >> 1)) * 1024 for m in range(8)])
    a(f"""v_lshlrev_b32 v61, 4, v2
    v_lshl_add_u32 v61, v1, 11, v61
    s_mul_i32 s30, s4, {24*2048}
    s_lshl_b32 s29, s3, 8
    s_add_u32 s30, s30, s29
    s_add_u32 s30, s30, {HA}
    v_and_b32 v13, 3, v2
    v_min_u32 v14, 2, v13
    v_bfe_u32 v15, v2, 2, 1
    v_mul_u32_u24 v52, 12, v15
    v_lshl_add_u32 v52, v14, 2, v52
    v_add_u32 v52, v52, v1
    v_lshlrev_b32 v52, 7, v52
    s_mul_i32 s31, s4, {24*128}
    s_lshl_b32 s29, s28, 4
    s_add_u32 s31, s31, s29
    s_add_u32 s31, s31, {HML}
    s_mov_b32 s74, 0x77777777
    s_mov_b32 s75, 0x77777777
    s_mov_b32 s82, 0
    s_lshl_b32 s28, s3, 9
    s_add_u32 s29, s28, {SH}
    v_lshlrev_b32 v54, 6, v15
    v_lshl_add_u32 v54, v1, 4, v54
    v_add_u32 v54, s29, v54
    ds_read_b128 v[24:27], v54 offset:256""")
    for j in range(1, 6): a(f"s_add_u32 s{75+j}, s30, {j*8192}")
    fix64(128, 36, after=8, n=4)
    a("s_waitcnt lgkmcnt(0)")
    gemv(4, 24, [128], [44])
    a(f"ds_write_b128 v20, v[44:47] offset:{RED+4096}\ns_waitcnt lgkmcnt(0)\ns_barrier")
    fix64(64, 36, after=0)
    stamp(7)
    a("L_WO:")
    def scales():
        stamp(1)
        a(f"""v_max_f32_dpp v36, v48, v48 quad_perm:[1,0,3,2] {DPPM}
        v_max_f32_dpp v36, v36, v36 quad_perm:[2,3,0,1] {DPPM}""")
        fold(16, 36, 33, 1, "v_max_f32"); fold(32, 36, 33, 1, "v_max_f32")
        a(f"""v_sub_f32 v36, v48, v36
        v_mul_f32 v36, {LOG2E}, v36
        v_exp_f32 v36, v36
        v_cndmask_b32 v49, 0, v49, s[74:75]
        v_mul_f32 v33, v36, v49
        v_add_f32_dpp v33, v33, v33 quad_perm:[1,0,3,2] {DPPM}
        v_add_f32_dpp v33, v33, v33 quad_perm:[2,3,0,1] {DPPM}""")
        fold(16, 33, 34, 1); fold(32, 33, 34, 1)
        a("v_rcp_f32 v33, v33\nv_mul_f32 v36, v36, v33")
        for j in range(6): a(f"v_mov_b32_dpp v{24+j}, v36 row_newbcast:{4*(j//3)+j%3} {DPPM}")
    OBs = [96 + 4 * j for j in range(6)]
    oload = lambda j: f"buffer_load_dwordx4 v[{OBs[j]}:{OBs[j]+3}], v22, {SW}, {'s30' if j == 0 else 's%d' % (75+j)} offen sc1"
    def pretouch():
        a(f"v_add_u32 v22, {LOC if dual else 0}, v61")
        for j in range(6): a(oload(j))
    spoll([(f"buffer_load_dwordx4 v[48:51], v23, {SW}, s31 offen sc1", 48, scales)], 32, twos=((23, 52),), pre=pretouch)
    spoll([(oload(j), OBs[j], None) for j in range(6)], 32, twos=((22, 61),))
    stamp(6)
    for jj in range(3):
        for b in range(2):
            j = 3 * b + jj
            sc = 24 + (j & ~1)
            for h in range(2):
                d = 32 + 4 * b + 2 * h
                sel = "op_sel:[0,1,0] op_sel_hi:[1,1,1]" if j & 1 else "op_sel_hi:[1,0,1]"
                if jj == 0:
                    sel = "op_sel:[0,1] op_sel_hi:[1,1]" if j & 1 else "op_sel_hi:[1,0]"
                    a(f"v_pk_mul_f32 {pr(d)}, {pr(OBs[j]+2*h)}, {pr(sc)} {sel}")
                else:
                    a(f"v_pk_fma_f32 {pr(d)}, {pr(OBs[j]+2*h)}, {pr(sc)}, {pr(d)} {sel}")
    for k in range(4): a(f"v_permlane16_swap_b32 v{32+k}, v{36+k}")
    add4(32, 32, 36)
    halve32(32)
    a("v_cvt_pk_bf16_f32 v55, v32, v33")
    shuffle(55)
    gemv(8, 24, [64], [44])
    a(f"ds_write_b128 v20, v[44:47] offset:{RED+8192}")
    barrier_nd()
    a("s_cbranch_execz L_exit\ns_branch L_end")

    a(f"""L_R:
    s_setprio 3
    s_waitcnt lgkmcnt(0)
    s_load_dword s83, s[62:63], 0""")
    if stamps: a("s_mov_b32 s46, 9")
    srd(16, P_WS, WS_BYTES)
    a(f"""v_and_b32 v21, 31, v0
    v_lshlrev_b32 v21, 4, v21
    v_lshrrev_b32 v12, 5, v0
    v_lshl_add_u32 v21, v12, 11, v21
    v_and_b32 v52, 7, v2
    v_lshlrev_b32 v52, 5, v52
    v_lshrrev_b32 v12, 3, v2
    v_lshl_add_u32 v52, v12, 4, v52
    v_and_b32 v58, 1, v1
    v_lshl_add_u32 v62, v58, 11, v52
    v_lshl_add_u32 v63, v58, 8, v52
    s_lshl_b32 s73, s4, 12
    s_lshl_b32 s28, s5, 8
    s_add_u32 s73, s73, s28
    s_add_u32 s73, s73, {HQ}
    s_add_u32 s74, s73, {LOC}
    s_lshl_b32 s75, s4, 3
    s_add_u32 s75, s75, s5
    s_lshl_b32 s75, s75, 9
    s_add_u32 s75, s75, {HM_L}
    s_lshl_b32 s78, s5, 12
    s_lshl_b32 s29, s4, 9
    s_add_u32 s78, s78, s29
    s_add_u32 s78, s78, {HW}""")
    tagsetup()
    a("s_barrier")
    if dry: a("s_mov_b64 exec, 0")
    a("L_R1:")
    for ph in range(3):
        barrier_nd()
        for k in range(4): a(f"ds_read_b128 v[{32+4*k}:{35+4*k}], v21 offset:{RED+4096*ph+512*k}")
        a("s_waitcnt lgkmcnt(0)")
        add4(32, 32, 36); add4(40, 40, 44); add4(32, 32, 40)
        fold(32, 32, 36)
        if ph == 0: round4(32, 32, 36)
        encode(32, ph != 0)
        S = lab("rs")
        a(f"s_cbranch_execz {S}\ns_mov_b32 exec_hi, 0")
        if ph == 0 and dual: a(f"buffer_store_dwordx4 v[32:35], v62, {SW}, s74 offen")
        a(f"buffer_store_dwordx4 v[32:35], {'v62' if ph == 0 else 'v63'}, {SW}, {('s73', 's75', 's78')[ph]} offen sc1\ns_mov_b32 exec_hi, -1")
        stamp((4, 14, 9)[ph])
        if ph == 0: a("s_barrier")
        if ph == 2: a("s_branch L_end")
        a(f"{S}:")
    a("s_mov_b64 exec, -1\ns_branch L_R1")
    a("L_Wx:\ns_cmp_eq_u32 s3, 9\ns_cbranch_scc1 L_R")
    if dry:
        a("""s_waitcnt lgkmcnt(0)
        s_mov_b64 exec, 0
        s_cmp_eq_u32 s3, 8
        s_cbranch_scc1 L_Q
        s_cmp_lg_u32 s3, 10
        s_cbranch_scc1 L_exit
        s_barrier
        s_branch L_WO""")
    else:
        a("s_endpgm")

    sec('F')
    def floads():
        S = lab("nf")
        a(f"""v_and_b32 v36, 4, v2
        v_cmp_eq_u32 vcc, 0, v36
        v_mov_b32 v36, s{P_WU}
        v_mov_b32 v38, s{P_WG}
        v_cndmask_b32 v36, v36, v38, vcc
        v_mov_b32 v37, s{P_WU+1}
        v_mov_b32 v38, s{P_WG+1}
        v_cndmask_b32 v37, v37, v38, vcc
        v_lshrrev_b32 v39, 3, v2
        v_lshl_add_u32 v38, v1, 4, v39
        v_mul_u32_u24 v38, 3584, v38
        v_and_b32 v35, 3, v2
        v_lshl_add_u32 v38, v35, 4, v38
        s_mul_i32 s28, s3, {64*3584}
        s_lshl_b32 s29, s6, 6
        s_add_u32 s28, s28, s29
        v_add_u32 v38, s28, v38
        v_add_co_u32 v36, vcc, v36, v38
        v_addc_co_u32 v37, vcc, 0, v37, vcc
        s_mov_b32 s28, 7168
        s_mov_b32 s29, 0
        v_lshl_add_u32 v39, v1, 3, v39
        v_and_b32 v35, 7, v2
        v_lshlrev_b32 v35, 4, v35
        v_lshl_add_u32 v39, v39, 10, v35""")
        spin(OST, 28, 32)
        stamp(9)
        for m in range(8):
            a(f"global_load_dwordx4 v[{96+4*m}:{99+4*m}], v[36:37], off {nt}")
            if m < 7: a("v_lshl_add_u64 v[36:37], v[36:37], 0, s[28:29]")
        srd(20, P_WD, 1792 * 1024)
        a("s_lshl_b32 s28, s6, 15\ns_add_u32 s28, s28, s32")
        for m in range(4): a(f"s_add_u32 s29, s28, {2048*m}\nbuffer_load_dwordx4 v[{128+4*m}:{131+4*m}], v39, {SC}, s29 offen {nt}")
        a(f"{S}:")
    def mhook(k):
        def h():
            halve32(144 + 4 * k)
            if k == 2:
                round2(144 + 4 * k, 144 + 4 * k, 33)
                a(f"v_pk_add_f32 {pr(144+4*k)}, {pr(144+4*k)}, 1.0 op_sel_hi:[1,0]")
            round2(12 + 2 * k, 144 + 4 * k, 33)
        return h
    a(f"""L_F0:
    s_cmp_eq_u32 s35, 11
    s_cbranch_scc1 L_end
    s_cmp_ge_u32 s3, 8
    s_cbranch_scc1 L_end
    s_setprio 0
    s_sub_u32 s5, s5, 24
    s_lshr_b32 s6, s5, 1
    s_lshl_b32 s6, s6, 3
    s_add_u32 s6, s6, s4
    s_lshl_b32 s6, s6, 1
    s_and_b32 s29, s5, 1
    s_add_u32 s6, s6, s29
    s_cmp_ge_u32 s6, 56
    s_cbranch_scc1 L_end
    v_lshlrev_b32 v12, 3, v2
    v_and_b32 v14, 1, v1
    v_lshl_add_u32 v12, v14, 10, v12
    v_lshrrev_b32 v15, 5, v0
    v_lshl_add_u32 v12, v15, 2, v12
    s_lshl_b32 s32, s3, 7""")
    srd(24, P_X, 2048)
    a(f"buffer_load_dword v55, v12, {SD}, s32 offen")
    selsetup(); shufsetup()
    a(f"""v_and_b32 v60, 31, v0
    v_lshlrev_b32 v60, 4, v60
    v_lshrrev_b32 v21, 5, v0
    v_lshl_add_u32 v21, v21, 11, v60
    v_mov_b32 v60, v21
    s_mov_b32 s34, 0
    s_mov_b32 s35, -1
    v_lshrrev_b32 v12, 3, v2
    v_and_b32 v13, 3, v2
    v_bfe_u32 v15, v2, 2, 1
    s_lshl_b32 s28, s3, 9
    s_add_u32 s29, s28, {SH}
    v_lshlrev_b32 v54, 6, v15
    v_lshl_add_u32 v54, v1, 4, v54
    v_add_u32 v54, s29, v54
    v_lshrrev_b32 v16, 5, v0
    v_and_b32 v17, 1, v1
    v_lshl_add_u32 v14, v12, 2, v13
    v_lshl_add_u32 v14, v17, 3, v14
    v_lshl_add_u32 v14, v14, 1, v16
    v_lshlrev_b32 v63, 3, v15
    v_lshl_add_u32 v63, v14, 4, v63
    v_add_u32 v63, s28, v63
    v_and_b32 v14, 6, v2
    v_lshlrev_b32 v53, 3, v14
    v_lshl_add_u32 v53, v12, 3, v53
    v_and_b32 v14, 1, v2
    v_lshl_add_u32 v53, v14, 2, v53
    v_lshl_add_u32 v53, v16, 1, v53
    v_lshl_add_u32 v53, v17, 6, v53
    v_add_u32 v53, s29, v53
    v_lshl_add_u32 v160, s3, 10, v3
    v_lshl_add_u32 v14, v17, 1, v15
    v_mul_u32_u24 v62, 7168, v14
    v_lshl_add_u32 v62, v13, 5, v62
    v_lshl_add_u32 v62, v12, 4, v62
    s_mul_i32 s73, s3, {4*7168}
    s_lshl_b32 s29, s6, 7
    s_add_u32 s73, s73, s29
    s_add_u32 s73, s73, {HF}
    s_lshl_b32 s81, s3, 12
    s_add_u32 s72, s81, {HM_L}
    s_add_u32 s81, s81, {HW}""")
    floads()
    def pref():
        fix64(96, 48, after=8); fix64(128, 48, after=4, n=4); unpack2(164, 55); stamp(14)
    spoll([(f"buffer_load_dwordx4 v[{144+4*k}:{147+4*k}], v60, {SW}, s72 offen offset:{512*k} sc1", 144 + 4 * k, mhook(k)) for k in range(4)], 32, pre=pref, guard=False)
    a("L_F:")
    stamp(10)
    spoll([(f"buffer_load_dwordx4 v[{32+4*k}:{35+4*k}], v3, {SW}, s81 offen offset:{1024*k} sc1", 32 + 4 * k, None) for k in range(4)], 48)
    stamp(11)
    add4(32, 32, 36); add4(40, 40, 44); add4(32, 32, 40)
    halve32(32)
    round2(32, 32, 36)
    pkmul(32, 32, 12)
    round2(32, 32, 36)
    pkadd(32, 32, 164)
    round2(22, 32, 36)
    a(f"ds_write_b64 v160, v[22:23] offset:{XG}\nds_write_b64 v160, v[18:19] offset:{XG+8}")
    ln2(22, 32, 36)
    pkmul(32, 32, 16)
    round2(32, 32, 36)
    pkadd(32, 32, 14)
    a("v_cvt_pk_bf16_f32 v55, v32, v33")
    shuffle(55)
    gemv(8, 24, [96], [44])
    a(f"v_cndmask_b32 v44, v44, v46, s[34:35]\nv_cndmask_b32 v45, v45, v47, s[34:35]\nds_write_b64 v63, v[44:45] offset:{RED+12288}")
    barrier_nd()
    for k in range(4): a(f"ds_read_b128 v[{32+4*k}:{35+4*k}], v21 offset:{RED+12288+512*k}")
    a("s_waitcnt lgkmcnt(0)")
    add4(32, 32, 36); add4(40, 40, 44); add4(32, 32, 40)
    a("""v_permlane32_swap_b32 v32, v33
    v_permlane32_swap_b32 v34, v35
    v_add_f32 v32, v32, v33
    v_add_f32 v33, v34, v35""")
    round2(32, 32, 36)
    silu(1, 34, 32, 36)
    a("""v_cvt_pk_bf16_f32 v34, v34, v34
    v_and_b32 v34, s70, v34
    v_mul_f32 v34, v34, v33
    v_cvt_pk_bf16_f32 v34, v34, v34
    ds_write_b16 v53, v34
    ds_read_b128 v[24:27], v54
    s_waitcnt lgkmcnt(0)""")
    gemv(4, 24, [128], [44])
    encode(44)
    a(f"""s_cbranch_execz L_X3
    s_mov_b32 exec_hi, 0
    buffer_store_dwordx4 v[44:47], v62, {SW}, s73 offen sc1
    s_mov_b32 exec_hi, -1""")
    stamp(12)
    a("s_branch L_end")

    a(f"""L_X2:
    s_sub_u32 s5, s5, 24
    s_lshr_b32 s6, s5, 1
    s_lshl_b32 s6, s6, 3
    s_add_u32 s6, s6, s4
    s_lshl_b32 s6, s6, 1
    s_and_b32 s29, s5, 1
    s_add_u32 s6, s6, s29
    s_cmp_ge_u32 s6, 56
    s_cbranch_scc1 L_end
    v_and_b32 v58, 1, v1
    s_mul_i32 s76, s6, 7168
    s_add_u32 s76, s76, {HF}
    s_add_u32 s77, s76, 4096
    s_and_b32 s28, s6, 3
    s_lshl_b32 s28, s28, 3
    v_and_b32 v56, 0x27, v0
    v_add_u32 v56, s28, v56
    s_lshr_b32 s29, s6, 2
    s_lshl_b32 s32, s29, 7
    s_lshl_b32 s29, s29, 10
    v_lshlrev_b32 v59, 4, v56
    v_lshl_add_u32 v59, v58, 2, v59
    v_add_u32 v59, s29, v59
    v_and_b32 v57, 15, v56
    v_lshlrev_b32 v57, 3, v57
    v_bfe_u32 v12, v56, 4, 1
    v_lshl_add_u32 v57, v12, 10, v57
    v_lshrrev_b32 v12, 5, v56
    v_lshl_add_u32 v57, v12, 2, v57
    v_lshl_add_u32 v57, v58, 1, v57""")
    srd(24, P_OUT, 2048)
    if dry: a("s_mov_b64 exec, 0\ns_branch L_F")
    a("L_X3:\ns_cbranch_execz L_X4\ns_cmp_ge_u32 s6, 32\ns_cbranch_scc1 L_end\ns_barrier\ns_barrier\nL_X4:")
    a(f"ds_read_b32 v40, v59 offset:{XG}\nds_read_b32 v42, v59 offset:{XG+8}\ns_waitcnt lgkmcnt(0)")
    spoll([(f"buffer_load_dwordx4 v[{64+4*k}:{67+4*k}], v3, {SW}, {'s76' if k < 4 else 's77'} offen offset:{1024*(k&3)} sc1", 64 + 4 * k, None) for k in range(7)], 32)
    stamp(13)
    for k in range(0, 12, 2): pkadd(64 + k, 64 + k, 80 + k)
    for k in range(0, 8, 2): pkadd(64 + k, 64 + k, 72 + k)
    add4(44, 64, 68)
    halve32(44)
    a(f"""v_permlane16_swap_b32 v44, v45
    v_add_f32 v44, v44, v45
    v_add_f32_dpp v44, v44, v44 row_ror:8 {DPPM}
    v_cvt_pk_bf16_f32 v44, v44, v44
    v_and_b32 v44, s70, v44
    v_mul_f32 v44, v44, v42
    v_cvt_pk_bf16_f32 v44, v44, v44
    v_and_b32 v44, s70, v44
    v_add_f32 v44, v44, v40
    v_cvt_pk_bf16_f32 v44, v44, v44
    s_cbranch_execz L_dry3
    s_mov_b32 exec_lo, 0x00ff00ff
    s_mov_b32 exec_hi, 0x00ff00ff
    buffer_store_short v44, v57, {SD}, s32 offen
    s_mov_b64 exec, -1
    s_cmp_lg_u32 s6, 0
    s_cbranch_scc1 L_end
    v_mov_b32 v36, s68
    v_mov_b32 v37, 0
    s_mov_b64 exec, 1
    buffer_store_dword v36, v37, {SW}, 0 offen
    s_mov_b64 exec, -1
    s_branch L_end
    L_dry3:
    s_mov_b64 exec, -1
    s_branch L_X3""")

    sec('end')
    a("L_end:")
    if stamps:
        a(f"""s_mov_b64 exec, -1
        s_memrealtime s[84:85]
        s_waitcnt lgkmcnt(0)
        v_writelane_b32 v166, s84, 8
        v_writelane_b32 v166, s86, 0
        s_lshl_b32 s28, s2, 4
        s_add_u32 s28, s28, s46
        s_lshl_b32 s28, s28, 6
        s_add_u32 s28, s28, {STAMP}
        v_lshlrev_b32 v37, 2, v0
        v_add_u32 v37, s28, v37
        s_mov_b64 exec, 0xffff
        global_store_dword v37, v166, s[62:63]""")
    a("L_exit:\ns_endpgm")

    o = sum([secs[n] for n in ('entry', 'Me', 'W', 'H', 'T', 'F', 'end')], [])
    body = pad(o)
    out = [HEADER.rstrip("\n"),
           "; Fused persistent kernel: 256 workgroups (one per CU), roles by workgroup id, tagged 16-byte hand-offs through d_ws.",
           f"; @launch grid=(256,1,1) block=({NW*64},1,1) lds={LDS_BYTES}",
           '.amdgcn_target "amdgcn-amd-amdhsa--gfx950"', ".text", f".globl {NAME}_kernel", ".p2align 12",
           f".type {NAME}_kernel,@function", f"{NAME}_kernel:"]
    out += [("" if l.endswith(":") else "    ") + l for l in body]
    out += ['.section .rodata,"a"', ".p2align 6", f".amdhsa_kernel {NAME}_kernel",
            "  .amdhsa_next_free_vgpr 168", "  .amdhsa_next_free_sgpr 102", "  .amdhsa_accum_offset 168",
            "  .amdhsa_group_segment_fixed_size 0", "  .amdhsa_kernarg_size 112", "  .amdhsa_user_sgpr_count 2",
            "  .amdhsa_user_sgpr_kernarg_segment_ptr 1", "  .amdhsa_system_sgpr_workgroup_id_x 1",
            "  .amdhsa_float_denorm_mode_32 3", ".end_amdhsa_kernel"]
    return "\n".join(out) + "\n"

if __name__ == "__main__":
    import argparse
    ap = argparse.ArgumentParser()
    ap.add_argument("-o", default="cdna_kernels/" + NAME + ".s")
    ap.add_argument("--stamps", action="store_true")
    ap.add_argument("--kw", default="")
    args = ap.parse_args()
    kw = eval("dict(" + args.kw + ")")
    open(args.o, "w").write(gen(stamps=args.stamps, **kw))
```

```python
import sys
sys.path.insert(0, "gen")
from asmlib import pad

NAME = "adaLN_cond__sliding_block_cached__swiglu_ffn__decode"
HEADER = open("cdna_kernels/" + NAME + ".s.ref").read().split("; Override launch")[0]

HG = 0x38000
HM_E, HQ, HML, HA, HW, HM_L, HF, STAMP = 0x10000, 0x20000, 0x30000, 0x40000, 0xB0000, 0xC0000, 0xD0000, 0x200000
WS_BYTES = 0x400000
NW = 12
MX, LS, FLG, ST = 0, 192, 384, 512
KRDY, QRDY, OST, QGO, FL1, TOK = 48, 52, 56, 60, 64, 384
QL = 1024
SH = 1024
RED = 6144
XG = RED + 16384
KT = RED + 3 * 8192
LDS_BYTES = KT + 11 * 8192
assert KT % 256 == 0
LOG2E = "0x3fb8aa3b"
POLL_MAX = 1 << 16
LOC = 0x100000
DPPM = "row_mask:0xf bank_mask:0xf"

def gen(stamps=False, nt='nt', dry=True, win1=24, t1=3, win2=28, vd=4, vx=4, dual=True, gm=63, qp=(8, 9), pk=0, fwhen=1, pff=True, evs=1, npo=3, pml=True, npq=4, wsplit=4, qgo=True, pqw=False, dbg=False):
    secs = {}
    cur = [None]
    secname = [None]
    DBG = {('Me', 2): 2, ('W', 3): 3, ('W', 4): 4, ('T', 5): 5, ('H', 6): 6, ('W', 6): 7, ('W', 9): 8, ('F', 11): 9, ('F', 12): 10, ('F', 13): 11,
           ('H', 1): 13, ('T', 3): 14, ('F', 10): 15}
    def sec(n):
        secs[n] = []; cur[0] = secs[n]; secname[0] = n
    def a(s):
        for l in s.strip().split("\n"):
            cur[0].append(l.strip())
    uid = [0]
    def lab(p):
        uid[0] += 1
        return f"L_{p}{uid[0]}"
    def stamp(k):
        if dbg:
            k = DBG.get((secname[0], k))
            if k is None: return
        if stamps:
            S = lab("st")
            a(f"s_cbranch_execz {S}\ns_memrealtime s[84:85]\ns_waitcnt lgkmcnt(0)\nv_writelane_b32 v166, s84, {k}\n{S}:")
    def srd(q, ptr, size):
        a(f"s_mov_b32 s{q}, s{ptr}\ns_mov_b32 s{q+1}, s{ptr+1}\ns_mov_b32 s{q+2}, {size:#x}\ns_mov_b32 s{q+3}, 0x00020000")
    P_X, P_K, P_V, P_WQ, P_WO, P_WG, P_WU, P_WD, P_C, P_WM, P_OUT, P_WS = 36, 38, 40, 42, 44, 48, 50, 52, 54, 56, 58, 62
    SA, SB, SW, SC, SD = "s[8:11]", "s[12:15]", "s[16:19]", "s[20:23]", "s[24:27]"
    def pr(r): return f"v[{r}:{r+1}]"
    def pkadd(d, x, y, mod=""): a(f"v_pk_add_f32 {pr(d)}, {pr(x)}, {pr(y)} {mod}")
    def pkmul(d, x, y, mod=""): a(f"v_pk_mul_f32 {pr(d)}, {pr(x)}, {pr(y)} {mod}")
    def add4(d, x, y): pkadd(d, x, y); pkadd(d + 2, x + 2, y + 2)
    def round2(d, s, t):
        a(f"v_cvt_pk_bf16_f32 v{t}, v{s}, v{s+1}\nv_lshlrev_b32 v{d}, 16, v{t}\nv_and_b32 v{d+1}, s70, v{t}")
    def round4(d, s, t):
        a(f"v_cvt_pk_bf16_f32 v{t}, v{s}, v{s+1}\nv_cvt_pk_bf16_f32 v{t+1}, v{s+2}, v{s+3}")
        a(f"v_lshlrev_b32 v{d}, 16, v{t}\nv_and_b32 v{d+1}, s70, v{t}\nv_lshlrev_b32 v{d+2}, 16, v{t+1}\nv_and_b32 v{d+3}, s70, v{t+1}")
    def unpack4(d, s):
        a(f"v_lshlrev_b32 v{d}, 16, v{s}\nv_and_b32 v{d+1}, s70, v{s}\nv_lshlrev_b32 v{d+2}, 16, v{s+1}\nv_and_b32 v{d+3}, s70, v{s+1}")
    def unpack2(d, s):
        a(f"v_lshlrev_b32 v{d}, 16, v{s}\nv_and_b32 v{d+1}, s70, v{s}")
    def tagsetup():
        a("""s_waitcnt lgkmcnt(0)
        s_mul_i32 s68, s83, 1664525
        s_add_u32 s68, s68, 1013904223
        s_and_b32 s64, s68, 0xff
        s_bfe_u32 s65, s68, 0x70009
        s_lshl_b32 s65, s65, 1
        s_andn2_b32 s66, 1, s68
        s_or_b32 s65, s65, s66
        s_bfe_u32 s66, s68, 0x80010
        s_lshr_b32 s67, s68, 24
        v_mov_b32 v8, s64
        v_mov_b32 v9, s65
        v_mov_b32 v10, s66
        v_mov_b32 v11, s67""")
    def decode(regs, t):
        allr = []
        for r in regs:
            for k in range(4):
                a(f"v_xor_b32 v{r+k}, s{64+k}, v{r+k}"); allr.append(r + k)
        a(f"v_or3_b32 v{t}, v{allr[0]}, v{allr[1]}, v{allr[2]}")
        rest = allr[3:]
        while len(rest) >= 2:
            a(f"v_or3_b32 v{t}, v{t}, v{rest[0]}, v{rest[1]}"); rest = rest[2:]
        a(f"v_bitop3_b32 v{t}, v{t}, v{rest[0]}, s69 bitop3:0x54\nv_cmp_ne_u32 vcc, 0, v{t}")
    def poll(loads, regs, t, two=None, pre=None):
        L, D, X = lab("poll"), lab("pdone"), lab("pdec")
        if two: a(f"v_add_u32 v{two[0]}, {LOC if dual else 0}, v{two[1]}")
        a(f"s_mov_b32 s71, {POLL_MAX-1}\ns_cbranch_execz {X}")
        if pre:
            W = lab("pw")
            for l in loads: a(l)
            pre()
            a(f"s_branch {W}")
        a(f"{L}:\ns_cbranch_execz {D}")
        if two and dual: a(f"s_and_b32 s47, s71, {gm}\ns_cselect_b32 s47, {LOC}, 0\nv_add_u32 v{two[0]}, s47, v{two[1]}")
        for l in loads: a(l)
        a(f"s_sub_u32 s71, s71, 1\ns_cbranch_scc1 {D}")
        if pre: a(f"{W}:")
        a(f"s_waitcnt vmcnt(0)\n{X}:")
        decode(regs, t)
        a(f"s_cbranch_vccnz {L}\n{D}:")
    def spoll(items, t, twos=(), pre=None, mid=None, guard=True):
        L, D, X, W = lab("sp"), lab("spd"), lab("spx"), lab("spw")
        for d_, s_ in twos: a(f"v_add_u32 v{d_}, {LOC if dual else 0}, v{s_}")
        a(f"s_mov_b32 s71, {POLL_MAX-1}\ns_mov_b32 s33, {(1 << len(items)) - 1}")
        if guard: a(f"s_cbranch_execz {X}")
        if pre:
            for l, _, _ in items: a(l)
            pre()
            a(f"s_branch {W}")
        a(f"{L}:")
        if guard: a(f"s_cbranch_execz {D}")
        if twos and dual:
            a(f"s_and_b32 s47, s71, {gm}\ns_cselect_b32 s47, {LOC}, 0")
            for d_, s_ in twos: a(f"v_add_u32 v{d_}, s47, v{s_}")
        for j, (l, _, _) in enumerate(items):
            S = lab("sl")
            a(f"s_bitcmp1_b32 s33, {j}\ns_cbranch_scc0 {S}\n{l}\n{S}:")
        a(f"s_sub_u32 s71, s71, 1\ns_cbranch_scc1 {D}\n{W}:\ns_waitcnt vmcnt(0)\n{X}:")
        for j, (_, r, hook) in enumerate(items):
            S = lab("sc")
            a(f"s_bitcmp1_b32 s33, {j}\ns_cbranch_scc0 {S}")
            decode([r], t)
            a(f"s_cbranch_vccnz {S}\ns_bitset0_b32 s33, {j}")
            if hook: hook()
            a(f"{S}:")
        if mid:
            a(f"s_cmp_eq_u32 s33, 0\ns_cbranch_scc1 {D}\ns_cbranch_execz {D}")
            mid()
            a(f"s_branch {L}\n{D}:")
        else:
            a(f"s_cmp_lg_u32 s33, 0\ns_cbranch_scc1 {L}\n{D}:")
    def encode(r, rnd=True):
        for k in range(4):
            if rnd: a(f"v_add_u32 v{r+k}, 0x80, v{r+k}")
        for k in range(4):
            a(f"v_and_or_b32 v{r+k}, v{r+k}, s69, v{8+k}")
    def fold(kind, r, t, n=4, op="v_add_f32"):
        for k in range(n): a(f"v_mov_b32 v{t+k}, v{r+k}")
        for k in range(n): a(f"v_permlane{kind}_swap_b32 v{r+k}, v{t+k}")
        if n == 4 and op == "v_add_f32": add4(r, r, t)
        else:
            for k in range(n): a(f"{op} v{r+k}, v{r+k}, v{t+k}")
    def halve32(r):
        a(f"v_permlane32_swap_b32 v{r}, v{r+2}\nv_permlane32_swap_b32 v{r+1}, v{r+3}")
        pkadd(r, r, r + 2)
    def selsetup():
        a("""v_and_b32 v12, 1, v2
        v_cmp_eq_u32 vcc, 1, v12
        v_mov_b32 v13, 0x0c0c0100
        v_mov_b32 v14, 0x01000c0c
        v_cndmask_b32 v13, v13, v14, vcc
        v_mov_b32 v14, 0x0c0c0302
        v_mov_b32 v15, 0x03020c0c
        v_cndmask_b32 v14, v14, v15, vcc
        v_and_b32 v12, 2, v2
        v_cmp_eq_u32 vcc, 2, v12
        v_mov_b32 v15, 0x0c0c0c0c
        v_cndmask_b32 v4, v13, v15, vcc
        v_cndmask_b32 v5, v15, v13, vcc
        v_cndmask_b32 v6, v14, v15, vcc
        v_cndmask_b32 v7, v15, v14, vcc""")
    def gemv(np_, P, Ws, Ds, AB=32, stride=4, waits=None, first=True):
        def build(m):
            b = AB + 4 * (m % 3)
            for k in range(4): a(f"v_perm_b32 v{b+k}, v{P+m}, v{P+m}, v{4+k}")
        build(0)
        for m in range(np_):
            if m + 1 < np_: build(m + 1)
            b = AB + 4 * (m % 3)
            if waits: a(f"s_waitcnt vmcnt({waits[m]})")
            for W, D in zip(Ws, Ds):
                c = "0" if (m == 0 and first) else f"v[{D}:{D+3}]"
                a(f"v_mfma_f32_16x16x32_bf16 v[{D}:{D+3}], v[{b}:{b+3}], v[{W+stride*m}:{W+stride*m+3}], {c}")
    def silu(n, d, s, t):
        for k in range(n): a(f"v_mul_f32 v{t+k}, 0xbfb8aa3b, v{s+k}")
        for k in range(n): a(f"v_exp_f32 v{t+k}, v{t+k}")
        for k in range(n): a(f"v_add_f32 v{t+k}, 1.0, v{t+k}")
        for k in range(n): a(f"v_rcp_f32 v{t+k}, v{t+k}")
        for k in range(n): a(f"v_mul_f32 v{d+k}, v{s+k}, v{t+k}")
    def barrier_nd():
        S = lab("nb")
        a(f"s_waitcnt lgkmcnt(0)\ns_cbranch_execz {S}\ns_barrier\n{S}:")
    def shuffle(src, wa=58):
        a(f"ds_write_b32 v{wa}, v{src}\nds_read_b128 v[24:27], v59\nds_read_b128 v[28:31], v59 offset:16\ns_waitcnt lgkmcnt(0)")
    def shufsetup():
        a(f"""s_lshl_b32 s28, s3, 9
        s_add_u32 s28, s28, {SH}
        v_and_b32 v58, 31, v0
        v_lshlrev_b32 v58, 3, v58
        v_lshrrev_b32 v59, 5, v0
        v_lshl_add_u32 v58, v59, 2, v58
        v_add_u32 v56, {ST}, v58
        v_and_b32 v56, -8, v56
        v_add_u32 v58, s28, v58
        v_and_b32 v57, 1, v1
        v_lshlrev_b32 v57, 7, v57
        v_lshl_add_u32 v57, v59, 3, v57
        s_lshl_b32 s29, s3, 4
        s_add_u32 s29, s29, {ST}
        v_add_u32 v57, s29, v57
        v_bfe_u32 v59, v2, 2, 1
        v_lshlrev_b32 v59, 7, v59
        v_lshl_add_u32 v59, v1, 5, v59
        v_add_u32 v59, s28, v59""")
    NEGB = "op_sel_hi:[1,0] neg_lo:[0,1] neg_hi:[0,1]"
    def ln2(x, n, t, drysafe=True):
        a(f"v_mov_b32_dpp v{t}, v{x} row_newbcast:0 {DPPM}")
        pkadd(t + 2, x, t, NEGB)
        a(f"v_add_f32 v{t+4}, v{t+2}, v{t+3}\nv_mul_f32 v{t+5}, v{t+2}, v{t+2}\nv_fmac_f32 v{t+5}, v{t+3}, v{t+3}")
        for k in (8, 4, 2, 1):
            a(f"v_add_f32_dpp v{t+4}, v{t+4}, v{t+4} row_ror:{k} {DPPM}\nv_add_f32_dpp v{t+5}, v{t+5}, v{t+5} row_ror:{k} {DPPM}")
        a(f"""v_fmamk_f32 v{t}, v{t+4}, 0x3d000000, v{t}
        v_mul_f32 v{t+4}, v{t+4}, v{t+4}
        v_fmamk_f32 v{t+1}, v{t+4}, 0xbd000000, v{t+5}
        ds_write_b64 v57, {pr(t)}""")
        barrier_nd() if drysafe else a("s_waitcnt lgkmcnt(0)\ns_barrier")
        a(f"""ds_read_b64 {pr(t)}, v56
        s_waitcnt lgkmcnt(0)
        v_mov_b32_dpp v{t+2}, v{t} row_newbcast:0 {DPPM}
        v_sub_f32 v{t+4}, v{t}, v{t+2}
        v_mul_f32 v{t+3}, v{t+4}, v{t+4}
        v_fmamk_f32 v{t+5}, v{t+3}, 0x42000000, v{t+1}""")
        for k in (8, 4, 2, 1):
            a(f"v_add_f32_dpp v{t+4}, v{t+4}, v{t+4} row_ror:{k} {DPPM}\nv_add_f32_dpp v{t+5}, v{t+5}, v{t+5} row_ror:{k} {DPPM}")
        a(f"""v_fmamk_f32 v{t}, v{t+4}, 0x3d800000, v{t+2}
        v_mul_f32 v{t+4}, v{t+4}, v{t+4}
        v_fmamk_f32 v{t+1}, v{t+4}, 0xc0000000, v{t+5}
        v_mul_f32 v{t+1}, 0x3b000000, v{t+1}
        v_max_f32 v{t+1}, 0, v{t+1}""")
        ln_tail(x, n, t)
    def ln_tail(x, n, t):
        round2(t, t, t + 2)
        a(f"v_add_f32 v{t+2}, 0x3727c5ac, v{t+1}")
        pkadd(n, x, t, NEGB)
        a(f"v_cvt_pk_bf16_f32 v{t+2}, v{t+2}, v{t+2}\nv_cvt_pk_bf16_f32 v{t+3}, v{n}, v{n+1}\nv_and_b32 v{t+2}, s70, v{t+2}\nv_sqrt_f32 v{t+2}, v{t+2}")
        unpack2(n, t + 3)
        a(f"v_cvt_pk_bf16_f32 v{t+2}, v{t+2}, v{t+2}\nv_and_b32 v{t+2}, s70, v{t+2}\nv_rcp_f32 v{t+2}, v{t+2}")
        pkmul(n, n, t + 2, "op_sel_hi:[1,0]")
        round2(n, n, t + 3)
    def ln_full(raw, u, x, n, t):
        for k in range(8): unpack2(u + 2 * k, raw + k)
        def red(src, d):
            for st in (8, 4, 2):
                for k in range(0, st, 2): pkadd(raw + k, src + k, src + st + k)
                src = raw
            a(f"v_add_f32 v{d}, v{raw}, v{raw+1}")
            for k in (8, 4, 2, 1): a(f"v_add_f32_dpp v{d}, v{d}, v{d} row_ror:{k} {DPPM}")
            fold(32, d, t + 4, 1)
            a(f"v_mul_f32 v{d}, 0x3b000000, v{d}")
        red(u, t)
        for k in range(8): pkadd(u + 2 * k, u + 2 * k, t, NEGB)
        for k in range(8): pkmul(u + 2 * k, u + 2 * k, u + 2 * k)
        red(u, t + 1)
        ln_tail(x, n, t)
    def wloads(reg, n, vo, srdq, sbase, steps, w=4):
        for m in range(n):
            a(f"s_add_u32 s29, {sbase}, {steps[m]}")
            a(f"buffer_load_dwordx{w} v[{reg+w*m}:{reg+w*m+w-1}], {vo}, {srdq}, s29 offen {nt}")
    def fix64(base, t, after=None, n=8):
        for m in range(n):
            if after is not None: a(f"s_waitcnt vmcnt({after + n - 1 - m})")
            r = base + 4 * m
            a(f"v_mov_b32 v{t}, v{r}\nv_mov_b32 v{t+1}, v{r+1}")
            a(f"v_mov_b32_dpp v{r}, v{r+2} row_ror:8 row_mask:0xf bank_mask:0xc\nv_mov_b32_dpp v{r+1}, v{r+3} row_ror:8 row_mask:0xf bank_mask:0xc")
            a(f"v_mov_b32_dpp v{r+2}, v{t} row_ror:8 row_mask:0xf bank_mask:0x3\nv_mov_b32_dpp v{r+3}, v{t+1} row_ror:8 row_mask:0xf bank_mask:0x3")
    def fix128(base):
        for m in range(8):
            r = base + 8 * m
            a(f"v_swap_b32 v{r+2}, v{r+4}\nv_swap_b32 v{r+3}, v{r+5}")
    def vo64(dst, rowbytes, t):
        a(f"""v_lshrrev_b32 v{t}, 3, v2
        v_lshl_add_u32 v{t}, v1, 4, v{t}
        v_mul_u32_u24 v{t}, {rowbytes}, v{t}
        v_and_b32 v{dst}, 7, v2
        v_lshl_add_u32 v{dst}, v{dst}, 4, v{t}""")

    sec('entry')
    a(f"""s_cmp_ge_u32 s2, 256
    s_cbranch_scc1 L_exit
    s_load_dwordx16 s[36:51], s[0:1], 0
    s_load_dwordx8 s[52:59], s[0:1], 64
    s_load_dwordx4 s[60:63], s[0:1], 96""")
    if stamps:
        a("s_memrealtime s[86:87]\nv_mov_b32 v166, 0")
    a(f"""v_lshrrev_b32 v1, 6, v0
    v_and_b32 v0, 63, v0
    v_readfirstlane_b32 s3, v1
    v_lshrrev_b32 v1, 4, v0
    v_and_b32 v2, 15, v0
    v_lshlrev_b32 v3, 4, v0
    s_and_b32 s4, s2, 7
    s_lshr_b32 s5, s2, 3
    s_mov_b32 s69, 0xffffff00
    s_mov_b32 s70, 0xffff0000
    s_cmp_lg_u32 s3, 2
    s_cbranch_scc1 L_nopf
    s_getpc_b64 s[28:29]
    L_pc:
    s_min_u32 s30, s5, (L_exit-L_pc)/1024-1
    s_lshl_b32 s30, s30, 10
    s_add_u32 s30, s30, (L_exit-L_pc)&0x3f0
    v_add_u32 v12, s30, v3
    global_load_dwordx4 v[160:163], v12, s[28:29]
    L_nopf:
    s_cmp_lt_u32 s5, 8
    s_cbranch_scc1 L_W
    s_and_b32 s6, s5, 1
    s_sub_u32 s7, s5, 8
    s_lshr_b32 s7, s7, 1
    s_mul_i32 s28, s7, 10
    s_min_u32 s29, s7, 8
    s_add_u32 s28, s28, s29
    s_lshl_b32 s28, s28, 13
    s_lshl_b32 s29, s6, 3
    s_add_u32 s29, s29, s4
    s_lshl_b32 s29, s29, 23
    s_add_u32 s28, s28, s29
    s_add_u32 s28, s28, 0x700000
    s_cmp_lt_u32 s7, 8
    s_cselect_b32 s35, 11, 10
    s_cmp_gt_u32 s3, 1
    s_cbranch_scc1 L_T
    s_cmp_eq_u32 s3, 1
    s_cbranch_scc1 L_X
    v_lshlrev_b32 v12, 2, v1
    v_xor_b32 v12, v12, v2
    v_lshlrev_b32 v12, 4, v12
    v_lshl_add_u32 v4, v1, 8, v12
    v_xor_b32 v5, 16, v4
    v_xor_b32 v6, 32, v4
    v_xor_b32 v7, 48, v4
    s_mov_b32 s31, {KT}
    s_mov_b32 s32, 3
    s_mov_b32 s30, {2*t1-3}
    s_lshl_b32 s33, s35, 1
    s_sub_u32 s33, s33, {2*t1}
    s_setprio 3
    s_waitcnt lgkmcnt(0)
    s_load_dword s83, s[62:63], 0""")
    if stamps: a("s_mov_b32 s46, s3")
    srd(8, P_K, 0x8000000)
    srd(12, P_WQ, 512 * 8192)
    a(f"""s_cmp_eq_u32 s35, 10
    s_cbranch_scc1 L_k0
    s_sub_u32 s29, s5, 8
    s_lshl_b32 s29, s29, 18
    s_lshl_b32 s34, s4, 10
    s_add_u32 s29, s29, s34
    v_lshrrev_b32 v12, 3, v0
    v_and_b32 v13, 7, v0
    v_lshlrev_b32 v13, 7, v13
    v_lshl_add_u32 v12, v12, 13, v13""")
    for k in range(npq):
        a(f"buffer_load_dword v161, v12, {SB}, s29 offen\ns_add_u32 s29, s29, 65536")
    if pqw:
        stamp(5)
        a("s_waitcnt vmcnt(0)")
        stamp(2)
    for nm, cnt, win in (("L_k0", "s32", 63), ("L_k1", "s30", win1), ("L_k2", "s33", win2)):
        a(f"{nm}:\ns_mov_b32 m0, s31\ns_add_u32 s31, s31, 4096")
        for j in range(4):
            a(f"buffer_load_dwordx4 v{4+j}, {SA}, s28 offen offset:{j*1024} {nt} lds")
            if win < 63 and j & 1: a(f"s_waitcnt vmcnt({win-2})")
        a(f"s_add_u32 s28, s28, 4096\ns_sub_u32 {cnt}, {cnt}, 1\ns_cmp_lg_u32 {cnt}, 0\ns_cbranch_scc1 {nm}")
        if nm == "L_k0": a("s_barrier")
        if nm == "L_k1":
            a(f"v_mov_b32 v30, {FLG}\nds_write_b32 v30, v30 offset:{QGO}")
            srd(12, P_WO, 4096 * 1024); srd(20, P_WM, 512 * 6144)
            a(f"""s_sub_u32 s32, s5, 8
            s_mul_i32 s29, s32, {22*1024}
            s_min_u32 s29, s29, {(512-24)*1024}
            s_lshl_b32 s30, s4, 19
            s_add_u32 s29, s29, s30
            v_lshlrev_b32 v27, 7, v0""")
            for k in range(npo): a(f"s_waitcnt vmcnt({max(0, min(win1, 32) - 8*(k+1)) + k})\nbuffer_load_dword v161, v27, {SB}, s29 offen\ns_add_u32 s29, s29, 8192")
            if pml: a(f"""s_mul_i32 s29, s32, 22
            s_min_u32 s29, s29, {512-22}
            s_mul_i32 s29, s29, 6144
            s_lshl_b32 s30, s4, 7
            s_add_u32 s29, s29, s30
            s_add_u32 s29, s29, 2048
            v_lshrrev_b32 v27, 2, v0
            v_min_u32 v12, 5, v27
            v_mul_u32_u24 v27, 6144, v27
            v_mul_u32_u24 v12, 6144, v12
            v_and_b32 v13, 3, v0
            v_lshl_add_u32 v27, v13, 10, v27
            v_lshl_add_u32 v12, v13, 10, v12
            s_add_u32 s30, s29, {16*6144}
            buffer_load_dword v161, v27, {SC}, s29 offen
            buffer_load_dword v161, v12, {SC}, s30 offen""")
    a(f"v_mov_b32 v30, {FLG}")
    for d in range(vd):
        if d and vx < 8: a(f"s_waitcnt vmcnt({max(0, min(win2, 32) - 8*d)})")
        a(f"ds_write_b32 v30, v30 offset:{TOK+4*d}")
    a(f"s_waitcnt vmcnt(0)\nds_write_b32 v30, v30 offset:{KRDY}")
    a("s_branch L_H0")
    sec('H')
    a("L_H0:")
    stamp(1)
    srd(16, P_WS, WS_BYTES)
    tagsetup()
    a(f"""s_mov_b32 s34, 0x07060302
    v_and_b32 v12, 3, v2
    v_lshrrev_b32 v13, 2, v2
    v_lshlrev_b32 v14, 3, v0
    v_mul_u32_u24 v25, 48, v13
    v_lshl_add_u32 v27, v1, 2, v12
    v_lshl_add_u32 v27, v13, 5, v27
    v_lshlrev_b32 v27, 4, v27
    v_lshlrev_b32 v28, 4, v13
    v_min_u32 v26, 10, v0
    v_lshlrev_b32 v26, 2, v26
    v_add_u32 v29, {KT}, v3
    v_add_u32 v31, {KT+7*8192}, v3
    v_mov_b32 v22, {LOG2E}
    s_mul_i32 s72, s4, 24
    s_mul_i32 s73, s6, 12
    s_add_u32 s72, s72, s73
    s_add_u32 s72, s72, s7
    s_lshl_b32 s73, s72, 11
    s_add_u32 s73, s73, {HA}
    s_lshl_b32 s72, s72, 7
    s_add_u32 s72, s72, {HML}
    s_add_u32 s74, s72, {LOC}
    s_add_u32 s75, s73, {LOC}""")
    if dry: a("s_mov_b64 exec, 0")
    a("L_H:")
    a(f"""L_f1:
    ds_read_b32 v16, v26 offset:{FLG+FL1}""")
    for k in range(3): a(f"ds_read_b128 v[{32+4*k}:{35+4*k}], v25 offset:{MX+16*k}")
    for k in range(3): a(f"ds_read_b128 v[{88+4*k}:{91+4*k}], v25 offset:{LS+16*k}")
    a("""s_waitcnt lgkmcnt(0)
    v_cmp_eq_u32 vcc, 0, v16
    s_cbranch_vccz L_f1d
    s_sleep 1
    s_branch L_f1
    L_f1d:""")
    stamp(3)
    a("""v_max3_f32 v16, v32, v33, v34
    v_max3_f32 v17, v35, v36, v37
    v_max3_f32 v18, v38, v39, v40
    v_max3_f32 v16, v16, v41, v42
    v_max3_f32 v16, v16, v17, v18""")
    for k in range(6): pkadd(32 + 2 * k, 32 + 2 * k, 16, NEGB)
    for k in range(6): pkmul(32 + 2 * k, 32 + 2 * k, 22, "op_sel_hi:[1,0]")
    for k in range(11): a(f"v_exp_f32 v{32+k}, v{32+k}")
    pkmul(18, 32, 88)
    for k in range(1, 5): a(f"v_pk_fma_f32 v[18:19], {pr(32+2*k)}, {pr(88+2*k)}, v[18:19]")
    a("""v_add_f32 v17, v18, v19
    v_fmac_f32 v17, v42, v98
    v_mov_b32 v18, 0
    v_mov_b32 v19, 0""")
    encode(16)
    a(f"""s_cbranch_execz L_col
    s_mov_b64 exec, 0x1111""")
    if dual: a(f"buffer_store_dwordx4 v[16:19], v28, {SW}, s74 offen")
    a(f"""buffer_store_dwordx4 v[16:19], v28, {SW}, s72 offen sc1
    s_mov_b64 exec, -1""")
    stamp(4)
    a("L_col:")
    if stamps: a("s_waitcnt lgkmcnt(0)")
    def colrd(t):
        r = 64 + 12 * (t & 1)
        base, off = ("v29", t * 8192) if t < 7 else ("v31", (t - 7) * 8192)
        a(f"ds_read_b32 v{r+8}, v30 offset:{4*t}\nds_read_b128 v[{r}:{r+3}], {base} offset:{off}\nds_read_b128 v[{r+4}:{r+7}], {base} offset:{off+1024}")
    colrd(0)
    for t in range(11):
        r = 64 + 12 * (t & 1)
        if t < 10:
            colrd(t + 1); a("s_waitcnt lgkmcnt(3)")
        else:
            a("s_waitcnt lgkmcnt(0)")
        a(f"L_cchk{t}:\nv_cmp_eq_u32 vcc, 0, v{r+8}\ns_cbranch_vccz L_cadd{t}")
        colrd(t)
        a(f"s_waitcnt lgkmcnt(0)\ns_branch L_cchk{t}\nL_cadd{t}:")
        for k in range(4):
            sc = pr(32 + (t & ~1))
            if t == 0: a(f"v_pk_mul_f32 {pr(48+2*k)}, {pr(r+2*k)}, {sc} op_sel_hi:[1,0]")
            else: a(f"v_pk_fma_f32 {pr(48+2*k)}, {pr(r+2*k)}, {sc}, {pr(48+2*k)} " + ("op_sel:[0,1,0] op_sel_hi:[1,1,1]" if t & 1 else "op_sel_hi:[1,0,1]"))
    encode(48); encode(52)
    a("s_cbranch_execz L_dryH")
    if dual: a(f"buffer_store_dwordx4 v[48:51], v27, {SW}, s75 offen\nbuffer_store_dwordx4 v[52:55], v27, {SW}, s75 offen offset:256")
    a(f"""buffer_store_dwordx4 v[48:51], v27, {SW}, s73 offen sc1
    buffer_store_dwordx4 v[52:55], v27, {SW}, s73 offen offset:256 sc1
    ds_write_b32 v30, v30 offset:{OST}
    s_waitcnt lgkmcnt(0)""")
    stamp(6)
    a("s_branch L_end\nL_dryH:\ns_mov_b64 exec, -1\ns_branch L_H")

    def spin(off, areg, t, sl=1):
        L, D = lab("sp"), lab("spd")
        a(f"""{L}:
        ds_read_b32 v{t}, v{areg} offset:{off}
        s_waitcnt lgkmcnt(0)
        v_cmp_eq_u32 vcc, 0, v{t}
        s_cbranch_vccz {D}
        s_sleep {sl}
        s_branch {L}
        {D}:""")
    sec('T')
    a(f"""L_T:
    s_sub_u32 s3, s3, 2
    v_lshrrev_b32 v13, 2, v2
    v_mul_u32_u24 v25, 48, v13
    s_lshl_b32 s29, s3, 2
    v_add_u32 v26, s29, v25
    v_mov_b32 v30, s29
    v_mov_b32 v16, 0
    v_mov_b32 v17, 0
    v_mov_b32 v18, 0
    v_mov_b32 v19, 0
    v_mov_b32 v28, {FLG}
    ds_write_b32 v30, v16 offset:{FLG}
    ds_write_b32 v30, v16 offset:{FLG+FL1}
    ds_write_b32 v30, v16 offset:{FLG+TOK}
    ds_write_b32 v30, v16 offset:{FLG+TOK+4}
    ds_write_b128 v28, v[16:19] offset:{KRDY}
    s_lshl_b32 s31, s3, 13
    s_add_u32 s28, s28, s31
    s_add_u32 s30, s28, 4096
    s_add_u32 s31, s31, {KT}
    s_mov_b32 s74, 0x11111111
    s_mov_b32 s75, 0x11111111
    s_mov_b32 s76, 0x22222222
    s_mov_b32 s77, 0x22222222
    s_mov_b32 s78, 0x44444444
    s_mov_b32 s79, 0x44444444
    s_mov_b32 s80, 0x88888888
    s_mov_b32 s81, 0x88888888
    s_mov_b32 s33, 0x05040100
    s_mov_b32 s34, 0x07060302
    v_and_b32 v12, 3, v2
    v_lshl_add_u32 v14, v12, 2, v13
    v_lshlrev_b32 v14, 8, v14
    v_xor_b32 v15, v1, v2
    v_lshl_add_u32 v14, v15, 4, v14
    v_add_u32 v4, s31, v14
    v_xor_b32 v5, 64, v4
    v_xor_b32 v6, 0x80, v4
    v_xor_b32 v7, 0xc0, v4
    v_lshlrev_b32 v15, 8, v13
    v_lshl_add_u32 v15, v1, 4, v15
    v_add_u32 v29, s31, v3
    v_mov_b32 v31, 1
    v_mov_b32 v20, 0x3db504f3
    v_mov_b32 v22, {LOG2E}
    s_waitcnt lgkmcnt(0)
    s_barrier""")
    if stamps: a("s_add_u32 s46, s3, 1")
    srd(12, P_V, 0x8000000)
    a("s_load_dword s83, s[62:63], 0")
    srd(16, P_WS, WS_BYTES)
    a(f"""s_lshl_b32 s32, s4, 1
    s_add_u32 s32, s32, s6
    s_lshl_b32 s32, s32, 11
    s_add_u32 s32, s32, {HQ}
    v_lshlrev_b32 v14, 3, v0""")
    tagsetup()
    a(f"s_cmp_lt_u32 s3, {qp[0]}\ns_cbranch_scc1 L_nq\ns_cmp_gt_u32 s3, {qp[1]}\ns_cbranch_scc1 L_nq")
    if qgo: spin(QGO, 28, 16, 2)
    poll([f"buffer_load_dwordx4 v[144:147], v27, {SW}, s32 offen sc1", f"buffer_load_dwordx4 v[148:151], v27, {SW}, s32 offen offset:1024 sc1"], [144, 148], 16, two=(27, 3))
    stamp(7)
    a(f"""v_perm_b32 v16, v145, v144, s34
    v_perm_b32 v17, v147, v146, s34
    v_perm_b32 v18, v149, v148, s34
    v_perm_b32 v19, v151, v150, s34
    ds_write_b64 v14, v[16:17] offset:{QL}
    ds_write_b64 v14, v[18:19] offset:{QL+512}
    ds_write_b32 v28, v28 offset:{QRDY}""")
    a("L_nq:")
    if dry: a("s_cmp_lg_u32 s3, 5\ns_cbranch_scc1 L_att\ns_mov_b64 exec, 0")
    a(f"""L_att:
    s_mov_b32 s72, 0
    s_cbranch_execz L_k
    s_setprio 2
    L_ev:
    ds_read_b32 v16, v30 offset:{FLG+TOK}
    ds_read_b64 v[18:19], v28 offset:{KRDY}
    s_waitcnt lgkmcnt(0)
    s_bitcmp1_b32 s72, 0
    s_cbranch_scc1 L_ev1
    v_cmp_ne_u32 vcc, 0, v16
    s_cbranch_vccnz L_v
    L_ev1:
    s_bitcmp1_b32 s72, 1
    s_cbranch_scc1 L_ev2
    v_cmp_ne_u32 vcc, 0, v18
    s_cbranch_vccnz L_k
    s_branch L_ev3
    L_ev2:
    s_bitcmp1_b32 s72, 2
    s_cbranch_scc1 L_ev3
    v_cmp_ne_u32 vcc, 0, v19
    s_cbranch_vccnz L_sc
    L_ev3:
    s_sleep {evs}
    s_branch L_ev
    L_v:""")
    for j in range(8):
        a(f"buffer_load_dwordx4 v[{32+4*j}:{35+4*j}], v3, {SB}, {'s28' if j < 4 else 's30'} offen offset:{(j&3)*1024} {nt}")
    stamp(1)
    a(f"""s_add_u32 s29, s3, {vd}
    s_cmp_gt_u32 s29, s35
    s_cbranch_scc1 L_v2
    s_waitcnt vmcnt({vx})
    ds_write_b32 v30, v31 offset:{FLG+TOK+4*vd}
    L_v2:
    s_bitcmp1_b32 s72, 2
    s_cbranch_scc1 L_pv
    s_bitset1_b32 s72, 0
    s_setprio 0
    s_branch L_ev
    L_k:""")
    for i in range(4):
        for t in range(2):
            a(f"ds_read_b128 v[{96+16*t+4*i}:{99+16*t+4*i}], v{4+i} offset:{t*4096}")
    stamp(2)
    a("s_bitset1_b32 s72, 1\ns_cbranch_execnz L_ev\nL_sc:")
    stamp(3)
    for i in range(4):
        a(f"ds_read_b128 v[{128+4*i}:{131+4*i}], v15 offset:{QL+64*i}")
    for i in range(4):
        a(f"s_waitcnt lgkmcnt({0 if stamps else 3-i})")
        for t in range(2):
            c = "0" if i == 0 else f"v[{152+4*t}:{155+4*t}]"
            a(f"v_mfma_f32_16x16x32_bf16 v[{152+4*t}:{155+4*t}], v[{96+16*t+4*i}:{99+16*t+4*i}], v[{128+4*i}:{131+4*i}], {c}")
    round4(152, 152, 16); round4(156, 156, 18)
    for k in range(4): pkmul(152 + 2 * k, 152 + 2 * k, 20, "op_sel_hi:[1,0]")
    round4(152, 152, 16); round4(156, 156, 18)
    a("""v_max3_f32 v16, v152, v153, v154
    v_max3_f32 v17, v155, v156, v157
    v_max3_f32 v16, v16, v158, v159
    v_max_f32 v16, v16, v17""")
    fold(16, 16, 17, 1, "v_max_f32"); fold(32, 16, 17, 1, "v_max_f32")
    a(f"ds_write_b32 v26, v16 offset:{MX}")
    for k in range(4): pkadd(152 + 2 * k, 152 + 2 * k, 16, NEGB)
    for k in range(4): pkmul(152 + 2 * k, 152 + 2 * k, 22, "op_sel_hi:[1,0]")
    for k in range(8): a(f"v_exp_f32 v{152+k}, v{152+k}")
    add4(96, 152, 156); pkadd(96, 96, 98)
    a("v_add_f32 v17, v96, v97")
    fold(16, 17, 18, 1); fold(32, 17, 18, 1)
    a(f"ds_write_b32 v26, v17 offset:{LS}\nds_write_b32 v30, v31 offset:{FLG+FL1}")
    for k in range(4): a(f"v_cvt_pk_bf16_f32 v{96+k}, v{152+2*k}, v{153+2*k}")
    for s in range(4):
        for k in range(4): a(f"v_cndmask_b32 v{128+4*s+k}, 0, v{96+k}, s[{74+2*s}:{75+2*s}]")
    stamp(4)
    a("""s_cbranch_execz L_pv
    s_bitset1_b32 s72, 2
    s_bitcmp1_b32 s72, 0
    s_cbranch_scc0 L_ev
    L_pv:""")
    for p in range(4):
        a(f"s_waitcnt vmcnt({6-2*p})")
        if p == 3: stamp(5)
        for i in range(8):
            a(f"v_perm_b32 v{64+4*i+p}, v{32+4*(2*p+1)+(i>>1)}, v{32+4*(2*p)+(i>>1)}, {'s34' if i & 1 else 's33'}")
    for aa in range(2):
        for s in range(4):
            i = 2 * s + aa
            c = "0" if s == 0 else f"v[{152+4*aa}:{155+4*aa}]"
            a(f"v_mfma_f32_16x16x32_bf16 v[{152+4*aa}:{155+4*aa}], v[{64+4*i}:{67+4*i}], v[{128+4*s}:{131+4*s}], {c}")
    a(f"""ds_write_b128 v29, v[152:155]
    ds_write_b128 v29, v[156:159] offset:1024
    ds_write_b32 v30, v31 offset:{FLG}
    s_waitcnt lgkmcnt(0)""")
    stamp(6)
    a(f"""s_cbranch_execnz L_pf
    s_mov_b64 exec, -1
    s_branch L_att
    L_pf:""")
    if pff:
        a(f"""s_cmp_lg_u32 s3, 0
        s_cbranch_scc1 L_F0
        s_sub_u32 s28, s5, 8
        s_and_b32 s29, s28, 7
        s_lshl_b32 s30, s35, 2
        v_mov_b32 v30, s30
        s_cmp_ge_u32 s28, 16
        s_cbranch_scc1 L_pfd
        s_cmp_lt_u32 s28, 8
        s_cselect_b32 s20, s{P_WG}, s{P_WU}
        s_cselect_b32 s21, s{P_WG+1}, s{P_WU+1}
        s_mov_b32 s22, {512*3584}
        s_cmp_lt_u32 s4, 4
        s_cselect_b32 s31, 3, 2
        v_and_b32 v14, 3, v0
        v_min_u32 v14, s31, v14
        v_lshrrev_b32 v13, 2, v0
        v_mul_u32_u24 v13, 3584, v13
        v_lshl_add_u32 v13, v14, 10, v13
        s_mul_i32 s30, s29, {64*3584}
        s_lshl_b32 s31, s4, 7
        s_add_u32 s30, s30, s31
        s_mov_b32 s31, {16*3584}
        s_branch L_pfg
        L_pfd:
        s_mov_b32 s20, s{P_WD}
        s_mov_b32 s21, s{P_WD+1}
        s_mov_b32 s22, {1792*1024}
        v_lshlrev_b32 v13, 7, v0
        s_lshr_b32 s30, s29, 1
        s_lshl_b32 s30, s30, 3
        s_add_u32 s30, s30, s4
        s_lshl_b32 s30, s30, 1
        s_and_b32 s29, s29, 1
        s_add_u32 s30, s30, s29
        s_lshl_b32 s30, s30, 15
        s_mov_b32 s31, 8192
        L_pfg:
        s_mov_b32 s23, 0x00020000""")
        spin(FLG + TOK - 4 * pk, 30, 16)
        for k in range(4):
            a(f"buffer_load_dword v161, v13, {SC}, s30 offen\ns_add_u32 s30, s30, s31")
            if k == 1: a("s_waitcnt vmcnt(1)")
        if stamps: a("s_waitcnt vmcnt(0)")
        stamp(7)
    a("s_branch L_F0")


    sec('Me')
    a(f"""L_X:
    s_mov_b32 s3, 12
    s_cmp_eq_u32 s35, 11
    s_cbranch_scc1 L_T
    s_setprio 3
    s_sub_u32 s33, s2, 192
    s_and_b32 s6, s33, 15
    s_lshr_b32 s7, s33, 4
    v_lshlrev_b32 v12, 3, v2
    v_and_b32 v13, 1, v1
    v_lshl_add_u32 v13, v13, 10, v12
    v_lshrrev_b32 v14, 5, v0
    v_lshl_add_u32 v61, v14, 7, v13
    s_lshl_b32 s28, s7, 8
    v_mul_u32_u24 v14, {16*6144}, v1
    v_add_u32 v14, v14, v12
    s_mul_i32 s30, s7, {128*6144}
    s_lshl_b32 s31, s6, 7
    s_add_u32 s30, s30, s31
    s_waitcnt lgkmcnt(0)
    s_load_dword s83, s[62:63], 0""")
    if stamps: a("s_mov_b32 s46, 11")
    srd(20, P_C, 2048); srd(8, P_WM, 512 * 6144)
    a(f"buffer_load_dwordx2 v[52:53], v61, {SC}, s28 offen")
    wloads(64, 32, "v14", SA, "s30", [((jj >> 4) * 64 + (jj & 15)) * 6144 for jj in range(32)], w=2)
    a(f"""v_lshrrev_b32 v13, 2, v2
    v_mul_u32_u24 v25, 48, v13
    v_mov_b32 v16, 0
    v_mov_b32 v17, 0
    v_mov_b32 v18, 0
    v_mov_b32 v19, 0
    v_mov_b32 v20, 0xff800000
    v_add_u32 v29, {KT+10*8192}, v3
    v_mov_b32 v63, {FLG}
    ds_write_b32 v25, v20 offset:{MX+40}
    ds_write_b32 v25, v16 offset:{LS+40}
    ds_write_b128 v29, v[16:19]
    ds_write_b128 v29, v[16:19] offset:1024
    ds_write_b32 v63, v63 offset:40
    ds_write_b32 v63, v63 offset:{FL1+40}
    s_waitcnt lgkmcnt(0)
    s_barrier""")
    stamp(1)
    srd(16, P_WS, WS_BYTES)
    selsetup(); tagsetup()
    a(f"""v_and_b32 v60, 31, v0
    v_lshlrev_b32 v60, 4, v60
    s_lshl_b32 s73, s6, 2
    s_add_u32 s73, s73, s7
    s_lshl_b32 s73, s73, 9
    s_add_u32 s73, s73, {HM_E}
    v_lshlrev_b32 v58, 3, v0
    v_bfe_u32 v59, v2, 2, 1
    v_lshlrev_b32 v59, 7, v59
    v_lshl_add_u32 v59, v1, 5, v59
    s_waitcnt vmcnt(32)""")
    unpack4(32, 52)
    silu(4, 32, 32, 36)
    a(f"""v_cvt_pk_bf16_f32 v56, v32, v33
    v_cvt_pk_bf16_f32 v57, v34, v35
    ds_write_b64 v58, v[56:57] offset:{SH+4096}
    ds_read_b128 v[16:19], v59 offset:{SH+4096}
    ds_read_b128 v[20:23], v59 offset:{SH+4096+16}
    ds_read_b128 v[24:27], v59 offset:{SH+4096+256}
    ds_read_b128 v[28:31], v59 offset:{SH+4096+272}
    s_waitcnt lgkmcnt(0)""")
    gemv(16, 16, [64], [44], waits=[30 - 2 * m for m in range(16)])
    encode(44)
    a(f"""s_mov_b32 exec_hi, 0
    buffer_store_dwordx4 v[44:47], v60, {SW}, s73 offen sc1
    s_mov_b32 exec_hi, -1""")
    stamp(2)
    a("s_branch L_X2")

    sec('W')
    a(f"""L_W:
    s_cmp_ge_u32 s3, 8
    s_cbranch_scc1 L_Wx
    v_lshlrev_b32 v12, 3, v2
    v_and_b32 v14, 1, v1
    v_lshl_add_u32 v12, v14, 10, v12
    v_lshrrev_b32 v15, 5, v0
    v_lshl_add_u32 v12, v15, 2, v12
    s_lshl_b32 s32, s3, 7
    v_lshlrev_b32 v14, 10, v14
    v_lshl_add_u32 v14, v15, 9, v14
    v_lshl_add_u32 v14, v2, 5, v14
    v_and_b32 v60, 31, v0
    v_lshlrev_b32 v53, 1, v60
    v_lshl_add_u32 v13, v15, 10, v53
    s_lshr_b32 s7, s5, 2
    s_lshl_b32 s7, s7, 8
    s_lshl_b32 s29, s3, 5
    s_add_u32 s7, s7, s29
    s_lshl_b32 s29, s7, 1
    s_waitcnt lgkmcnt(0)
    s_load_dword s83, s[62:63], 0""")
    if stamps: a("s_mov_b32 s46, s3")
    srd(24, P_X, 2048); srd(20, P_C, 2048)
    a(f"""buffer_load_dword v54, v12, {SD}, s32 offen
    buffer_load_dwordx4 v[112:115], v14, {SD}, 0 offen
    buffer_load_dwordx4 v[116:119], v14, {SD}, 0 offen offset:16
    buffer_load_ushort v55, v13, {SC}, s29 offen
    v_lshl_add_u32 v53, v15, 6, v53""")
    srd(12, P_WQ, 512 * 8192)
    vo64(52, 8192, 14)
    a("""s_lshl_b32 s31, s3, 19
    s_lshl_b32 s29, s4, 10
    s_add_u32 s31, s31, s29
    s_lshl_b32 s29, s5, 7
    s_add_u32 s31, s31, s29""")
    a(f"s_cmp_ge_u32 s3, {wsplit}\ns_cbranch_scc1 L_nw1")
    wloads(64, 8, "v52", SB, "s31", [2 * m * 8192 for m in range(8)])
    a("L_nw1:")
    srd(16, P_WS, WS_BYTES)
    selsetup(); shufsetup()
    a(f"""v_add_u32 v53, s28, v53
    v_lshlrev_b32 v60, 4, v60
    s_lshl_b32 s29, s3, 9
    v_add_u32 v20, s29, v60
    v_lshrrev_b32 v61, 5, v0
    v_lshl_add_u32 v61, v61, 14, v60
    s_lshl_b32 s30, s3, 11
    s_add_u32 s30, s30, {HM_E}""")
    tagsetup()
    a(f"s_waitcnt vmcnt(8)\ns_cmp_lt_u32 s3, {wsplit}\ns_cbranch_scc1 L_nw2\ns_waitcnt vmcnt(0)\nL_nw2:")
    unpack2(164, 54)
    ln_full(112, 120, 164, 16, 36)
    stamp(5)
    a(f"s_cmp_lt_u32 s3, {wsplit}\ns_cbranch_scc1 L_nw3")
    wloads(64, 8, "v52", SB, "s31", [2 * m * 8192 for m in range(8)])
    a("L_nw3:\ns_barrier\nL_Q:")
    def preq():
        a("v_lshlrev_b32 v32, 16, v55")
        silu(1, 32, 32, 36)
        a("v_cvt_pk_bf16_f32 v32, v32, v32\nds_write_b16 v53, v32 offset:256")
        fix64(64, 36, after=4); stamp(2)
    spoll([(f"buffer_load_dwordx4 v[{96+4*k}:{99+4*k}], v61, {SW}, s30 offen offset:{512*k} sc1", 96 + 4 * k, None) for k in range(4)], 32, pre=preq)
    stamp(3)
    add4(96, 96, 100); add4(104, 104, 108); add4(96, 96, 104)
    a("v_permlane32_swap_b32 v96, v98\nv_permlane32_swap_b32 v97, v99")
    round4(96, 96, 36)
    a("v_pk_add_f32 v[98:99], v[98:99], 1.0 op_sel_hi:[1,0]")
    round2(98, 98, 36)
    pkmul(98, 98, 16)
    round2(98, 98, 36)
    pkadd(98, 98, 96)
    a("v_cvt_pk_bf16_f32 v55, v98, v99")
    shuffle(55)
    gemv(8, 24, [64], [44])
    a(f"ds_write_b128 v20, v[44:47] offset:{RED}")
    barrier_nd()
    a("s_cbranch_execz L_exit")
    srd(8, P_WM, 512 * 6144); srd(12, P_WO, 4096 * 1024)
    a(f"""s_mul_i32 s30, s7, 6144
    s_and_b32 s28, s5, 3
    s_lshl_b32 s29, s28, 10
    s_add_u32 s30, s30, s29
    s_lshl_b32 s29, s4, 7
    s_add_u32 s30, s30, s29
    s_add_u32 s30, s30, 2048
    v_lshrrev_b32 v12, 3, v2
    v_lshl_add_u32 v14, v1, 3, v12
    v_mul_u32_u24 v14, 6144, v14
    v_and_b32 v15, 7, v2
    v_lshlrev_b32 v15, 4, v15
    v_add_u32 v14, v14, v15
    v_lshl_add_u32 v13, v1, 2, v12
    v_lshl_add_u32 v13, v13, 13, v15
    s_lshl_b32 s31, s4, 9
    s_lshr_b32 s28, s3, 1
    s_lshl_b32 s29, s28, 7
    s_add_u32 s31, s31, s29
    s_and_b32 s29, s3, 1
    s_add_u32 s31, s31, s29
    s_lshl_b32 s31, s31, 10
    s_lshl_b32 s29, s5, 7
    s_add_u32 s31, s31, s29
    s_barrier""")
    wloads(128, 4, "v14", SA, "s30", [2 * m * 6144 for m in range(4)])
    wloads(64, 8, "v13", SB, "s31", [(16 * (m & 1) + 2 * (m >> 1)) * 1024 for m in range(8)])
    a(f"""v_lshlrev_b32 v61, 4, v2
    v_lshl_add_u32 v61, v1, 11, v61
    s_mul_i32 s30, s4, {24*2048}
    s_lshl_b32 s29, s3, 8
    s_add_u32 s30, s30, s29
    s_add_u32 s30, s30, {HA}
    v_and_b32 v13, 3, v2
    v_min_u32 v14, 2, v13
    v_bfe_u32 v15, v2, 2, 1
    v_mul_u32_u24 v52, 12, v15
    v_lshl_add_u32 v52, v14, 2, v52
    v_add_u32 v52, v52, v1
    v_lshlrev_b32 v52, 7, v52
    s_mul_i32 s31, s4, {24*128}
    s_lshl_b32 s29, s28, 4
    s_add_u32 s31, s31, s29
    s_add_u32 s31, s31, {HML}
    s_mov_b32 s74, 0x77777777
    s_mov_b32 s75, 0x77777777
    s_mov_b32 s82, 0
    s_lshl_b32 s28, s3, 9
    s_add_u32 s29, s28, {SH}
    v_lshlrev_b32 v54, 6, v15
    v_lshl_add_u32 v54, v1, 4, v54
    v_add_u32 v54, s29, v54
    ds_read_b128 v[24:27], v54 offset:256""")
    for j in range(1, 6): a(f"s_add_u32 s{75+j}, s30, {j*8192}")
    fix64(128, 36, after=8, n=4)
    a("s_waitcnt lgkmcnt(0)")
    gemv(4, 24, [128], [44])
    a(f"ds_write_b128 v20, v[44:47] offset:{RED+4096}\ns_waitcnt lgkmcnt(0)\ns_barrier")
    fix64(64, 36, after=0)
    stamp(7)
    a("L_WO:")
    def scales():
        stamp(1)
        a(f"""v_max_f32_dpp v36, v48, v48 quad_perm:[1,0,3,2] {DPPM}
        v_max_f32_dpp v36, v36, v36 quad_perm:[2,3,0,1] {DPPM}""")
        fold(16, 36, 33, 1, "v_max_f32"); fold(32, 36, 33, 1, "v_max_f32")
        a(f"""v_sub_f32 v36, v48, v36
        v_mul_f32 v36, {LOG2E}, v36
        v_exp_f32 v36, v36
        v_cndmask_b32 v49, 0, v49, s[74:75]
        v_mul_f32 v33, v36, v49
        v_add_f32_dpp v33, v33, v33 quad_perm:[1,0,3,2] {DPPM}
        v_add_f32_dpp v33, v33, v33 quad_perm:[2,3,0,1] {DPPM}""")
        fold(16, 33, 34, 1); fold(32, 33, 34, 1)
        a("v_rcp_f32 v33, v33\nv_mul_f32 v36, v36, v33")
        for j in range(6): a(f"v_mov_b32_dpp v{24+j}, v36 row_newbcast:{4*(j//3)+j%3} {DPPM}")
    OBs = [96 + 4 * j for j in range(6)]
    oload = lambda j: f"buffer_load_dwordx4 v[{OBs[j]}:{OBs[j]+3}], v22, {SW}, {'s30' if j == 0 else 's%d' % (75+j)} offen sc1"
    def pretouch():
        a(f"v_add_u32 v22, {LOC if dual else 0}, v61")
        for j in range(6): a(oload(j))
    spoll([(f"buffer_load_dwordx4 v[48:51], v23, {SW}, s31 offen sc1", 48, scales)], 32, twos=((23, 52),), pre=pretouch)
    spoll([(oload(j), OBs[j], None) for j in range(6)], 32, twos=((22, 61),))
    stamp(6)
    for jj in range(3):
        for b in range(2):
            j = 3 * b + jj
            sc = 24 + (j & ~1)
            for h in range(2):
                d = 32 + 4 * b + 2 * h
                sel = "op_sel:[0,1,0] op_sel_hi:[1,1,1]" if j & 1 else "op_sel_hi:[1,0,1]"
                if jj == 0:
                    sel = "op_sel:[0,1] op_sel_hi:[1,1]" if j & 1 else "op_sel_hi:[1,0]"
                    a(f"v_pk_mul_f32 {pr(d)}, {pr(OBs[j]+2*h)}, {pr(sc)} {sel}")
                else:
                    a(f"v_pk_fma_f32 {pr(d)}, {pr(OBs[j]+2*h)}, {pr(sc)}, {pr(d)} {sel}")
    for k in range(4): a(f"v_permlane16_swap_b32 v{32+k}, v{36+k}")
    add4(32, 32, 36)
    halve32(32)
    a("v_cvt_pk_bf16_f32 v55, v32, v33")
    shuffle(55)
    gemv(8, 24, [64], [44])
    a(f"ds_write_b128 v20, v[44:47] offset:{RED+8192}")
    barrier_nd()
    a("s_cbranch_execz L_exit\ns_branch L_end")

    a(f"""L_R:
    s_setprio 3
    s_waitcnt lgkmcnt(0)
    s_load_dword s83, s[62:63], 0""")
    if stamps: a("s_mov_b32 s46, 9")
    srd(16, P_WS, WS_BYTES)
    a(f"""v_and_b32 v21, 31, v0
    v_lshlrev_b32 v21, 4, v21
    v_lshrrev_b32 v12, 5, v0
    v_lshl_add_u32 v21, v12, 11, v21
    v_and_b32 v52, 7, v2
    v_lshlrev_b32 v52, 5, v52
    v_lshrrev_b32 v12, 3, v2
    v_lshl_add_u32 v52, v12, 4, v52
    v_and_b32 v58, 1, v1
    v_lshl_add_u32 v62, v58, 11, v52
    v_lshl_add_u32 v63, v58, 8, v52
    s_lshl_b32 s73, s4, 12
    s_lshl_b32 s28, s5, 8
    s_add_u32 s73, s73, s28
    s_add_u32 s73, s73, {HQ}
    s_add_u32 s74, s73, {LOC}
    s_lshl_b32 s75, s4, 3
    s_add_u32 s75, s75, s5
    s_lshl_b32 s75, s75, 9
    s_add_u32 s75, s75, {HM_L}
    s_lshl_b32 s78, s5, 12
    s_lshl_b32 s29, s4, 9
    s_add_u32 s78, s78, s29
    s_add_u32 s78, s78, {HW}""")
    tagsetup()
    a("s_barrier")
    if dry: a("s_mov_b64 exec, 0")
    a("L_R1:")
    for ph in range(3):
        barrier_nd()
        for k in range(4): a(f"ds_read_b128 v[{32+4*k}:{35+4*k}], v21 offset:{RED+4096*ph+512*k}")
        a("s_waitcnt lgkmcnt(0)")
        add4(32, 32, 36); add4(40, 40, 44); add4(32, 32, 40)
        fold(32, 32, 36)
        if ph == 0: round4(32, 32, 36)
        encode(32, ph != 0)
        S = lab("rs")
        a(f"s_cbranch_execz {S}\ns_mov_b32 exec_hi, 0")
        if ph == 0 and dual: a(f"buffer_store_dwordx4 v[32:35], v62, {SW}, s74 offen")
        a(f"buffer_store_dwordx4 v[32:35], {'v62' if ph == 0 else 'v63'}, {SW}, {('s73', 's75', 's78')[ph]} offen sc1\ns_mov_b32 exec_hi, -1")
        stamp((4, 14, 9)[ph])
        if ph == 0: a("s_barrier")
        if ph == 2: a("s_branch L_end")
        a(f"{S}:")
    a("s_mov_b64 exec, -1\ns_branch L_R1")
    a("L_Wx:\ns_cmp_eq_u32 s3, 9\ns_cbranch_scc1 L_R")
    if dry:
        a("""s_waitcnt lgkmcnt(0)
        s_mov_b64 exec, 0
        s_cmp_eq_u32 s3, 8
        s_cbranch_scc1 L_Q
        s_cmp_lg_u32 s3, 10
        s_cbranch_scc1 L_exit
        s_barrier
        s_branch L_WO""")
    else:
        a("s_endpgm")

    sec('F')
    def floads():
        S = lab("nf")
        a(f"""v_and_b32 v36, 4, v2
        v_cmp_eq_u32 vcc, 0, v36
        v_mov_b32 v36, s{P_WU}
        v_mov_b32 v38, s{P_WG}
        v_cndmask_b32 v36, v36, v38, vcc
        v_mov_b32 v37, s{P_WU+1}
        v_mov_b32 v38, s{P_WG+1}
        v_cndmask_b32 v37, v37, v38, vcc
        v_lshrrev_b32 v39, 3, v2
        v_lshl_add_u32 v38, v1, 4, v39
        v_mul_u32_u24 v38, 3584, v38
        v_and_b32 v35, 3, v2
        v_lshl_add_u32 v38, v35, 4, v38
        s_mul_i32 s28, s3, {64*3584}
        s_lshl_b32 s29, s6, 6
        s_add_u32 s28, s28, s29
        v_add_u32 v38, s28, v38
        v_add_co_u32 v36, vcc, v36, v38
        v_addc_co_u32 v37, vcc, 0, v37, vcc
        s_mov_b32 s28, 7168
        s_mov_b32 s29, 0
        v_lshl_add_u32 v39, v1, 3, v39
        v_and_b32 v35, 7, v2
        v_lshlrev_b32 v35, 4, v35
        v_lshl_add_u32 v39, v39, 10, v35""")
        spin(OST, 28, 32)
        stamp(9)
        for m in range(8):
            a(f"global_load_dwordx4 v[{96+4*m}:{99+4*m}], v[36:37], off {nt}")
            if m < 7: a("v_lshl_add_u64 v[36:37], v[36:37], 0, s[28:29]")
        srd(20, P_WD, 1792 * 1024)
        a("s_lshl_b32 s28, s6, 15\ns_add_u32 s28, s28, s32")
        for m in range(4): a(f"s_add_u32 s29, s28, {2048*m}\nbuffer_load_dwordx4 v[{128+4*m}:{131+4*m}], v39, {SC}, s29 offen {nt}")
        a(f"{S}:")
    def mhook(k):
        def h():
            halve32(144 + 4 * k)
            if k == 2:
                round2(144 + 4 * k, 144 + 4 * k, 33)
                a(f"v_pk_add_f32 {pr(144+4*k)}, {pr(144+4*k)}, 1.0 op_sel_hi:[1,0]")
            round2(12 + 2 * k, 144 + 4 * k, 33)
        return h
    a(f"""L_F0:
    s_cmp_eq_u32 s35, 11
    s_cbranch_scc1 L_end
    s_cmp_ge_u32 s3, 8
    s_cbranch_scc1 L_end
    s_setprio 0
    s_sub_u32 s5, s5, 24
    s_lshr_b32 s6, s5, 1
    s_lshl_b32 s6, s6, 3
    s_add_u32 s6, s6, s4
    s_lshl_b32 s6, s6, 1
    s_and_b32 s29, s5, 1
    s_add_u32 s6, s6, s29
    s_cmp_ge_u32 s6, 56
    s_cbranch_scc1 L_end
    v_lshlrev_b32 v12, 3, v2
    v_and_b32 v14, 1, v1
    v_lshl_add_u32 v12, v14, 10, v12
    v_lshrrev_b32 v15, 5, v0
    v_lshl_add_u32 v12, v15, 2, v12
    s_lshl_b32 s32, s3, 7""")
    srd(24, P_X, 2048)
    a(f"buffer_load_dword v55, v12, {SD}, s32 offen")
    selsetup(); shufsetup()
    a(f"""v_and_b32 v60, 31, v0
    v_lshlrev_b32 v60, 4, v60
    v_lshrrev_b32 v21, 5, v0
    v_lshl_add_u32 v21, v21, 11, v60
    v_mov_b32 v60, v21
    s_mov_b32 s34, 0
    s_mov_b32 s35, -1
    v_lshrrev_b32 v12, 3, v2
    v_and_b32 v13, 3, v2
    v_bfe_u32 v15, v2, 2, 1
    s_lshl_b32 s28, s3, 9
    s_add_u32 s29, s28, {SH}
    v_lshlrev_b32 v54, 6, v15
    v_lshl_add_u32 v54, v1, 4, v54
    v_add_u32 v54, s29, v54
    v_lshrrev_b32 v16, 5, v0
    v_and_b32 v17, 1, v1
    v_lshl_add_u32 v14, v12, 2, v13
    v_lshl_add_u32 v14, v17, 3, v14
    v_lshl_add_u32 v14, v14, 1, v16
    v_lshlrev_b32 v63, 3, v15
    v_lshl_add_u32 v63, v14, 4, v63
    v_add_u32 v63, s28, v63
    v_and_b32 v14, 6, v2
    v_lshlrev_b32 v53, 3, v14
    v_lshl_add_u32 v53, v12, 3, v53
    v_and_b32 v14, 1, v2
    v_lshl_add_u32 v53, v14, 2, v53
    v_lshl_add_u32 v53, v16, 1, v53
    v_lshl_add_u32 v53, v17, 6, v53
    v_add_u32 v53, s29, v53
    v_lshl_add_u32 v160, s3, 10, v3
    v_lshl_add_u32 v14, v17, 1, v15
    v_mul_u32_u24 v62, 7168, v14
    v_lshl_add_u32 v62, v13, 5, v62
    v_lshl_add_u32 v62, v12, 4, v62
    s_mul_i32 s73, s3, {4*7168}
    s_lshl_b32 s29, s6, 7
    s_add_u32 s73, s73, s29
    s_add_u32 s73, s73, {HF}
    s_lshl_b32 s81, s3, 12
    s_add_u32 s72, s81, {HM_L}
    s_add_u32 s81, s81, {HW}""")
    floads()
    def pref():
        fix64(96, 48, after=8); fix64(128, 48, after=4, n=4); unpack2(164, 55); stamp(14)
    spoll([(f"buffer_load_dwordx4 v[{144+4*k}:{147+4*k}], v60, {SW}, s72 offen offset:{512*k} sc1", 144 + 4 * k, mhook(k)) for k in range(4)], 32, pre=pref, guard=False)
    a("L_F:")
    stamp(10)
    spoll([(f"buffer_load_dwordx4 v[{32+4*k}:{35+4*k}], v3, {SW}, s81 offen offset:{1024*k} sc1", 32 + 4 * k, None) for k in range(4)], 48)
    stamp(11)
    add4(32, 32, 36); add4(40, 40, 44); add4(32, 32, 40)
    halve32(32)
    round2(32, 32, 36)
    pkmul(32, 32, 12)
    round2(32, 32, 36)
    pkadd(32, 32, 164)
    round2(22, 32, 36)
    a(f"ds_write_b64 v160, v[22:23] offset:{XG}\nds_write_b64 v160, v[18:19] offset:{XG+8}")
    ln2(22, 32, 36)
    pkmul(32, 32, 16)
    round2(32, 32, 36)
    pkadd(32, 32, 14)
    a("v_cvt_pk_bf16_f32 v55, v32, v33")
    shuffle(55)
    gemv(8, 24, [96], [44])
    a(f"v_cndmask_b32 v44, v44, v46, s[34:35]\nv_cndmask_b32 v45, v45, v47, s[34:35]\nds_write_b64 v63, v[44:45] offset:{RED+12288}")
    barrier_nd()
    for k in range(4): a(f"ds_read_b128 v[{32+4*k}:{35+4*k}], v21 offset:{RED+12288+512*k}")
    a("s_waitcnt lgkmcnt(0)")
    add4(32, 32, 36); add4(40, 40, 44); add4(32, 32, 40)
    a("""v_permlane32_swap_b32 v32, v33
    v_permlane32_swap_b32 v34, v35
    v_add_f32 v32, v32, v33
    v_add_f32 v33, v34, v35""")
    round2(32, 32, 36)
    silu(1, 34, 32, 36)
    a("""v_cvt_pk_bf16_f32 v34, v34, v34
    v_and_b32 v34, s70, v34
    v_mul_f32 v34, v34, v33
    v_cvt_pk_bf16_f32 v34, v34, v34
    ds_write_b16 v53, v34
    ds_read_b128 v[24:27], v54
    s_waitcnt lgkmcnt(0)""")
    gemv(4, 24, [128], [44])
    encode(44)
    a(f"""s_cbranch_execz L_X3
    s_mov_b32 exec_hi, 0
    buffer_store_dwordx4 v[44:47], v62, {SW}, s73 offen sc1
    s_mov_b32 exec_hi, -1""")
    stamp(12)
    a("s_branch L_end")

    a(f"""L_X2:
    s_sub_u32 s5, s5, 24
    s_lshr_b32 s6, s5, 1
    s_lshl_b32 s6, s6, 3
    s_add_u32 s6, s6, s4
    s_lshl_b32 s6, s6, 1
    s_and_b32 s29, s5, 1
    s_add_u32 s6, s6, s29
    s_cmp_ge_u32 s6, 56
    s_cbranch_scc1 L_end
    v_and_b32 v58, 1, v1
    s_mul_i32 s76, s6, 7168
    s_add_u32 s76, s76, {HF}
    s_add_u32 s77, s76, 4096
    s_and_b32 s28, s6, 3
    s_lshl_b32 s28, s28, 3
    v_and_b32 v56, 0x27, v0
    v_add_u32 v56, s28, v56
    s_lshr_b32 s29, s6, 2
    s_lshl_b32 s32, s29, 7
    s_lshl_b32 s29, s29, 10
    v_lshlrev_b32 v59, 4, v56
    v_lshl_add_u32 v59, v58, 2, v59
    v_add_u32 v59, s29, v59
    v_and_b32 v57, 15, v56
    v_lshlrev_b32 v57, 3, v57
    v_bfe_u32 v12, v56, 4, 1
    v_lshl_add_u32 v57, v12, 10, v57
    v_lshrrev_b32 v12, 5, v56
    v_lshl_add_u32 v57, v12, 2, v57
    v_lshl_add_u32 v57, v58, 1, v57""")
    srd(24, P_OUT, 2048)
    if dry: a("s_mov_b64 exec, 0\ns_branch L_F")
    a("L_X3:\ns_cbranch_execz L_X4\ns_cmp_ge_u32 s6, 32\ns_cbranch_scc1 L_end\ns_barrier\ns_barrier\nL_X4:")
    a(f"ds_read_b32 v40, v59 offset:{XG}\nds_read_b32 v42, v59 offset:{XG+8}\ns_waitcnt lgkmcnt(0)")
    spoll([(f"buffer_load_dwordx4 v[{64+4*k}:{67+4*k}], v3, {SW}, {'s76' if k < 4 else 's77'} offen offset:{1024*(k&3)} sc1", 64 + 4 * k, None) for k in range(7)], 32)
    stamp(13)
    for k in range(0, 12, 2): pkadd(64 + k, 64 + k, 80 + k)
    for k in range(0, 8, 2): pkadd(64 + k, 64 + k, 72 + k)
    add4(44, 64, 68)
    halve32(44)
    a(f"""v_permlane16_swap_b32 v44, v45
    v_add_f32 v44, v44, v45
    v_add_f32_dpp v44, v44, v44 row_ror:8 {DPPM}
    v_cvt_pk_bf16_f32 v44, v44, v44
    v_and_b32 v44, s70, v44
    v_mul_f32 v44, v44, v42
    v_cvt_pk_bf16_f32 v44, v44, v44
    v_and_b32 v44, s70, v44
    v_add_f32 v44, v44, v40
    v_cvt_pk_bf16_f32 v44, v44, v44
    s_cbranch_execz L_dry3
    s_mov_b32 exec_lo, 0x00ff00ff
    s_mov_b32 exec_hi, 0x00ff00ff
    buffer_store_short v44, v57, {SD}, s32 offen
    s_mov_b64 exec, -1
    s_cmp_lg_u32 s6, 0
    s_cbranch_scc1 L_end
    v_mov_b32 v36, s68
    v_mov_b32 v37, 0
    s_mov_b64 exec, 1
    buffer_store_dword v36, v37, {SW}, 0 offen
    s_mov_b64 exec, -1
    s_branch L_end
    L_dry3:
    s_mov_b64 exec, -1
    s_branch L_X3""")

    sec('end')
    a("L_end:")
    if dbg:
        a(f"""s_mov_b64 exec, -1
        s_memrealtime s[84:85]
        s_waitcnt lgkmcnt(0)
        v_writelane_b32 v166, s84, 12
        v_writelane_b32 v166, s86, 1
        s_not_b32 s86, s86
        v_writelane_b32 v166, s86, 0
        v_lshlrev_b32 v37, 2, v0
        s_mov_b64 exec, 0xffff
        global_atomic_umax v37, v166, s[60:61]""")
    elif stamps:
        a(f"""s_mov_b64 exec, -1
        s_memrealtime s[84:85]
        s_waitcnt lgkmcnt(0)
        v_writelane_b32 v166, s84, 8
        v_writelane_b32 v166, s86, 0
        s_lshl_b32 s28, s2, 4
        s_add_u32 s28, s28, s46
        s_lshl_b32 s28, s28, 6
        s_add_u32 s28, s28, {STAMP}
        v_lshlrev_b32 v37, 2, v0
        v_add_u32 v37, s28, v37
        s_mov_b64 exec, 0xffff
        global_store_dword v37, v166, s[62:63]""")
    a("L_exit:\ns_endpgm")

    o = sum([secs[n] for n in ('entry', 'Me', 'W', 'H', 'T', 'F', 'end')], [])
    body = pad(o)
    out = [HEADER.rstrip("\n"),
           "; Fused persistent kernel: 256 workgroups (one per CU), roles by workgroup id, tagged 16-byte hand-offs through d_ws.",
           f"; @launch grid=(256,1,1) block=({NW*64},1,1) lds={LDS_BYTES}",
           '.amdgcn_target "amdgcn-amd-amdhsa--gfx950"', ".text", f".globl {NAME}_kernel", ".p2align 12",
           f".type {NAME}_kernel,@function", f"{NAME}_kernel:"]
    out += [("" if l.endswith(":") else "    ") + l for l in body]
    out += ['.section .rodata,"a"', ".p2align 6", f".amdhsa_kernel {NAME}_kernel",
            "  .amdhsa_next_free_vgpr 168", "  .amdhsa_next_free_sgpr 102", "  .amdhsa_accum_offset 168",
            "  .amdhsa_group_segment_fixed_size 0", "  .amdhsa_kernarg_size 112", "  .amdhsa_user_sgpr_count 2",
            "  .amdhsa_user_sgpr_kernarg_segment_ptr 1", "  .amdhsa_system_sgpr_workgroup_id_x 1",
            "  .amdhsa_float_denorm_mode_32 3", ".end_amdhsa_kernel"]
    return "\n".join(out) + "\n"

if __name__ == "__main__":
    import argparse
    ap = argparse.ArgumentParser()
    ap.add_argument("-o", default="cdna_kernels/" + NAME + ".s")
    ap.add_argument("--stamps", action="store_true")
    ap.add_argument("--kw", default="")
    args = ap.parse_args()
    kw = eval("dict(" + args.kw + ")")
    open(args.o, "w").write(gen(stamps=args.stamps, **kw))
```

```python
import sys
sys.path.insert(0, "gen")
from asmlib import pad

NAME = "adaLN_cond__sliding_block_cached__swiglu_ffn__decode"
HEADER = open("cdna_kernels/" + NAME + ".s.ref").read().split("; Override launch")[0]

HG = 0x38000
HM_E, HQ, HML, HA, HW, HM_L, HF, STAMP = 0x10000, 0x20000, 0x30000, 0x40000, 0xB0000, 0xC0000, 0xD0000, 0x200000
WS_BYTES = 0x400000
NW = 12
MX, LS, FLG, ST = 0, 192, 384, 512
KRDY, QRDY, OST, QGO, FL1, TOK = 48, 52, 56, 60, 64, 384
QL = 1024
SH = 1024
RED = 6144
XG = RED + 16384
KT = RED + 3 * 8192
LDS_BYTES = KT + 11 * 8192
assert KT % 256 == 0
LOG2E = "0x3fb8aa3b"
POLL_MAX = 1 << 16
LOC = 0x100000
DPPM = "row_mask:0xf bank_mask:0xf"

def gen(stamps=False, nt='nt', dry=True, win1=24, t1=3, win2=28, vd=4, vx=4, dual=True, gm=63, qp=(8, 9), pk=0, fwhen=1, pff=True, evs=1, npo=3, pml=True, npq=4, wsplit=4, qgo=True, pqw=False, dbg=False):
    secs = {}
    cur = [None]
    secname = [None]
    DBG = {('Me', 2): 2, ('W', 3): 3, ('W', 4): 4, ('T', 5): 5, ('H', 6): 6, ('W', 6): 7, ('W', 9): 8, ('F', 11): 9, ('F', 12): 10, ('F', 13): 11,
           ('H', 1): 13, ('T', 3): 14, ('F', 10): 15}
    def sec(n):
        secs[n] = []; cur[0] = secs[n]; secname[0] = n
    def a(s):
        for l in s.strip().split("\n"):
            cur[0].append(l.strip())
    uid = [0]
    def lab(p):
        uid[0] += 1
        return f"L_{p}{uid[0]}"
    def stamp(k):
        if dbg:
            k = DBG.get((secname[0], k))
            if k is None: return
        if stamps:
            S = lab("st")
            a(f"s_cbranch_execz {S}\ns_memrealtime s[84:85]\ns_waitcnt lgkmcnt(0)\nv_writelane_b32 v166, s84, {k}\n{S}:")
    def srd(q, ptr, size):
        a(f"s_mov_b32 s{q}, s{ptr}\ns_mov_b32 s{q+1}, s{ptr+1}\ns_mov_b32 s{q+2}, {size:#x}\ns_mov_b32 s{q+3}, 0x00020000")
    P_X, P_K, P_V, P_WQ, P_WO, P_WG, P_WU, P_WD, P_C, P_WM, P_OUT, P_WS = 36, 38, 40, 42, 44, 48, 50, 52, 54, 56, 58, 62
    SA, SB, SW, SC, SD = "s[8:11]", "s[12:15]", "s[16:19]", "s[20:23]", "s[24:27]"
    def pr(r): return f"v[{r}:{r+1}]"
    def pkadd(d, x, y, mod=""): a(f"v_pk_add_f32 {pr(d)}, {pr(x)}, {pr(y)} {mod}")
    def pkmul(d, x, y, mod=""): a(f"v_pk_mul_f32 {pr(d)}, {pr(x)}, {pr(y)} {mod}")
    def add4(d, x, y): pkadd(d, x, y); pkadd(d + 2, x + 2, y + 2)
    def round2(d, s, t):
        a(f"v_cvt_pk_bf16_f32 v{t}, v{s}, v{s+1}\nv_lshlrev_b32 v{d}, 16, v{t}\nv_and_b32 v{d+1}, s70, v{t}")
    def round4(d, s, t):
        a(f"v_cvt_pk_bf16_f32 v{t}, v{s}, v{s+1}\nv_cvt_pk_bf16_f32 v{t+1}, v{s+2}, v{s+3}")
        a(f"v_lshlrev_b32 v{d}, 16, v{t}\nv_and_b32 v{d+1}, s70, v{t}\nv_lshlrev_b32 v{d+2}, 16, v{t+1}\nv_and_b32 v{d+3}, s70, v{t+1}")
    def unpack4(d, s):
        a(f"v_lshlrev_b32 v{d}, 16, v{s}\nv_and_b32 v{d+1}, s70, v{s}\nv_lshlrev_b32 v{d+2}, 16, v{s+1}\nv_and_b32 v{d+3}, s70, v{s+1}")
    def unpack2(d, s):
        a(f"v_lshlrev_b32 v{d}, 16, v{s}\nv_and_b32 v{d+1}, s70, v{s}")
    def tagsetup():
        a("""s_waitcnt lgkmcnt(0)
        s_mul_i32 s68, s83, 1664525
        s_add_u32 s68, s68, 1013904223
        s_and_b32 s64, s68, 0xff
        s_bfe_u32 s65, s68, 0x70009
        s_lshl_b32 s65, s65, 1
        s_andn2_b32 s66, 1, s68
        s_or_b32 s65, s65, s66
        s_bfe_u32 s66, s68, 0x80010
        s_lshr_b32 s67, s68, 24
        v_mov_b32 v8, s64
        v_mov_b32 v9, s65
        v_mov_b32 v10, s66
        v_mov_b32 v11, s67""")
    def decode(regs, t):
        allr = []
        for r in regs:
            for k in range(4):
                a(f"v_xor_b32 v{r+k}, s{64+k}, v{r+k}"); allr.append(r + k)
        a(f"v_or3_b32 v{t}, v{allr[0]}, v{allr[1]}, v{allr[2]}")
        rest = allr[3:]
        while len(rest) >= 2:
            a(f"v_or3_b32 v{t}, v{t}, v{rest[0]}, v{rest[1]}"); rest = rest[2:]
        a(f"v_bitop3_b32 v{t}, v{t}, v{rest[0]}, s69 bitop3:0x54\nv_cmp_ne_u32 vcc, 0, v{t}")
    def poll(loads, regs, t, two=None, pre=None):
        L, D, X = lab("poll"), lab("pdone"), lab("pdec")
        if two: a(f"v_add_u32 v{two[0]}, {LOC if dual else 0}, v{two[1]}")
        a(f"s_mov_b32 s71, {POLL_MAX-1}\ns_cbranch_execz {X}")
        if pre:
            W = lab("pw")
            for l in loads: a(l)
            pre()
            a(f"s_branch {W}")
        a(f"{L}:\ns_cbranch_execz {D}")
        if two and dual: a(f"s_and_b32 s47, s71, {gm}\ns_cselect_b32 s47, {LOC}, 0\nv_add_u32 v{two[0]}, s47, v{two[1]}")
        for l in loads: a(l)
        a(f"s_sub_u32 s71, s71, 1\ns_cbranch_scc1 {D}")
        if pre: a(f"{W}:")
        a(f"s_waitcnt vmcnt(0)\n{X}:")
        decode(regs, t)
        a(f"s_cbranch_vccnz {L}\n{D}:")
    def spoll(items, t, twos=(), pre=None, mid=None, guard=True):
        L, D, X, W = lab("sp"), lab("spd"), lab("spx"), lab("spw")
        for d_, s_ in twos: a(f"v_add_u32 v{d_}, {LOC if dual else 0}, v{s_}")
        a(f"s_mov_b32 s71, {POLL_MAX-1}\ns_mov_b32 s33, {(1 << len(items)) - 1}")
        if guard: a(f"s_cbranch_execz {X}")
        if pre:
            for l, _, _ in items: a(l)
            pre()
            a(f"s_branch {W}")
        a(f"{L}:")
        if guard: a(f"s_cbranch_execz {D}")
        if twos and dual:
            a(f"s_and_b32 s47, s71, {gm}\ns_cselect_b32 s47, {LOC}, 0")
            for d_, s_ in twos: a(f"v_add_u32 v{d_}, s47, v{s_}")
        for j, (l, _, _) in enumerate(items):
            S = lab("sl")
            a(f"s_bitcmp1_b32 s33, {j}\ns_cbranch_scc0 {S}\n{l}\n{S}:")
        a(f"s_sub_u32 s71, s71, 1\ns_cbranch_scc1 {D}\n{W}:\ns_waitcnt vmcnt(0)\n{X}:")
        for j, (_, r, hook) in enumerate(items):
            S = lab("sc")
            a(f"s_bitcmp1_b32 s33, {j}\ns_cbranch_scc0 {S}")
            decode([r], t)
            a(f"s_cbranch_vccnz {S}\ns_bitset0_b32 s33, {j}")
            if hook: hook()
            a(f"{S}:")
        if mid:
            a(f"s_cmp_eq_u32 s33, 0\ns_cbranch_scc1 {D}\ns_cbranch_execz {D}")
            mid()
            a(f"s_branch {L}\n{D}:")
        else:
            a(f"s_cmp_lg_u32 s33, 0\ns_cbranch_scc1 {L}\n{D}:")
    def encode(r, rnd=True):
        for k in range(4):
            if rnd: a(f"v_add_u32 v{r+k}, 0x80, v{r+k}")
        for k in range(4):
            a(f"v_and_or_b32 v{r+k}, v{r+k}, s69, v{8+k}")
    def fold(kind, r, t, n=4, op="v_add_f32"):
        for k in range(n): a(f"v_mov_b32 v{t+k}, v{r+k}")
        for k in range(n): a(f"v_permlane{kind}_swap_b32 v{r+k}, v{t+k}")
        if n == 4 and op == "v_add_f32": add4(r, r, t)
        else:
            for k in range(n): a(f"{op} v{r+k}, v{r+k}, v{t+k}")
    def halve32(r):
        a(f"v_permlane32_swap_b32 v{r}, v{r+2}\nv_permlane32_swap_b32 v{r+1}, v{r+3}")
        pkadd(r, r, r + 2)
    def selsetup():
        a("""v_and_b32 v12, 1, v2
        v_cmp_eq_u32 vcc, 1, v12
        v_mov_b32 v13, 0x0c0c0100
        v_mov_b32 v14, 0x01000c0c
        v_cndmask_b32 v13, v13, v14, vcc
        v_mov_b32 v14, 0x0c0c0302
        v_mov_b32 v15, 0x03020c0c
        v_cndmask_b32 v14, v14, v15, vcc
        v_and_b32 v12, 2, v2
        v_cmp_eq_u32 vcc, 2, v12
        v_mov_b32 v15, 0x0c0c0c0c
        v_cndmask_b32 v4, v13, v15, vcc
        v_cndmask_b32 v5, v15, v13, vcc
        v_cndmask_b32 v6, v14, v15, vcc
        v_cndmask_b32 v7, v15, v14, vcc""")
    def gemv(np_, P, Ws, Ds, AB=32, stride=4, waits=None, first=True):
        def build(m):
            b = AB + 4 * (m % 3)
            for k in range(4): a(f"v_perm_b32 v{b+k}, v{P+m}, v{P+m}, v{4+k}")
        build(0)
        for m in range(np_):
            if m + 1 < np_: build(m + 1)
            b = AB + 4 * (m % 3)
            if waits: a(f"s_waitcnt vmcnt({waits[m]})")
            for W, D in zip(Ws, Ds):
                c = "0" if (m == 0 and first) else f"v[{D}:{D+3}]"
                a(f"v_mfma_f32_16x16x32_bf16 v[{D}:{D+3}], v[{b}:{b+3}], v[{W+stride*m}:{W+stride*m+3}], {c}")
    def silu(n, d, s, t):
        for k in range(n): a(f"v_mul_f32 v{t+k}, 0xbfb8aa3b, v{s+k}")
        for k in range(n): a(f"v_exp_f32 v{t+k}, v{t+k}")
        for k in range(n): a(f"v_add_f32 v{t+k}, 1.0, v{t+k}")
        for k in range(n): a(f"v_rcp_f32 v{t+k}, v{t+k}")
        for k in range(n): a(f"v_mul_f32 v{d+k}, v{s+k}, v{t+k}")
    def barrier_nd():
        S = lab("nb")
        a(f"s_waitcnt lgkmcnt(0)\ns_cbranch_execz {S}\ns_barrier\n{S}:")
    def shuffle(src, wa=58):
        a(f"ds_write_b32 v{wa}, v{src}\nds_read_b128 v[24:27], v59\nds_read_b128 v[28:31], v59 offset:16\ns_waitcnt lgkmcnt(0)")
    def shufsetup():
        a(f"""s_lshl_b32 s28, s3, 9
        s_add_u32 s28, s28, {SH}
        v_and_b32 v58, 31, v0
        v_lshlrev_b32 v58, 3, v58
        v_lshrrev_b32 v59, 5, v0
        v_lshl_add_u32 v58, v59, 2, v58
        v_add_u32 v56, {ST}, v58
        v_and_b32 v56, -8, v56
        v_add_u32 v58, s28, v58
        v_and_b32 v57, 1, v1
        v_lshlrev_b32 v57, 7, v57
        v_lshl_add_u32 v57, v59, 3, v57
        s_lshl_b32 s29, s3, 4
        s_add_u32 s29, s29, {ST}
        v_add_u32 v57, s29, v57
        v_bfe_u32 v59, v2, 2, 1
        v_lshlrev_b32 v59, 7, v59
        v_lshl_add_u32 v59, v1, 5, v59
        v_add_u32 v59, s28, v59""")
    NEGB = "op_sel_hi:[1,0] neg_lo:[0,1] neg_hi:[0,1]"
    def ln2(x, n, t, drysafe=True):
        a(f"v_mov_b32_dpp v{t}, v{x} row_newbcast:0 {DPPM}")
        pkadd(t + 2, x, t, NEGB)
        a(f"v_add_f32 v{t+4}, v{t+2}, v{t+3}\nv_mul_f32 v{t+5}, v{t+2}, v{t+2}\nv_fmac_f32 v{t+5}, v{t+3}, v{t+3}")
        for k in (8, 4, 2, 1):
            a(f"v_add_f32_dpp v{t+4}, v{t+4}, v{t+4} row_ror:{k} {DPPM}\nv_add_f32_dpp v{t+5}, v{t+5}, v{t+5} row_ror:{k} {DPPM}")
        a(f"""v_fmamk_f32 v{t}, v{t+4}, 0x3d000000, v{t}
        v_mul_f32 v{t+4}, v{t+4}, v{t+4}
        v_fmamk_f32 v{t+1}, v{t+4}, 0xbd000000, v{t+5}
        ds_write_b64 v57, {pr(t)}""")
        barrier_nd() if drysafe else a("s_waitcnt lgkmcnt(0)\ns_barrier")
        a(f"""ds_read_b64 {pr(t)}, v56
        s_waitcnt lgkmcnt(0)
        v_mov_b32_dpp v{t+2}, v{t} row_newbcast:0 {DPPM}
        v_sub_f32 v{t+4}, v{t}, v{t+2}
        v_mul_f32 v{t+3}, v{t+4}, v{t+4}
        v_fmamk_f32 v{t+5}, v{t+3}, 0x42000000, v{t+1}""")
        for k in (8, 4, 2, 1):
            a(f"v_add_f32_dpp v{t+4}, v{t+4}, v{t+4} row_ror:{k} {DPPM}\nv_add_f32_dpp v{t+5}, v{t+5}, v{t+5} row_ror:{k} {DPPM}")
        a(f"""v_fmamk_f32 v{t}, v{t+4}, 0x3d800000, v{t+2}
        v_mul_f32 v{t+4}, v{t+4}, v{t+4}
        v_fmamk_f32 v{t+1}, v{t+4}, 0xc0000000, v{t+5}
        v_mul_f32 v{t+1}, 0x3b000000, v{t+1}
        v_max_f32 v{t+1}, 0, v{t+1}""")
        ln_tail(x, n, t)
    def ln_tail(x, n, t):
        round2(t, t, t + 2)
        a(f"v_add_f32 v{t+2}, 0x3727c5ac, v{t+1}")
        pkadd(n, x, t, NEGB)
        a(f"v_cvt_pk_bf16_f32 v{t+2}, v{t+2}, v{t+2}\nv_cvt_pk_bf16_f32 v{t+3}, v{n}, v{n+1}\nv_and_b32 v{t+2}, s70, v{t+2}\nv_sqrt_f32 v{t+2}, v{t+2}")
        unpack2(n, t + 3)
        a(f"v_cvt_pk_bf16_f32 v{t+2}, v{t+2}, v{t+2}\nv_and_b32 v{t+2}, s70, v{t+2}\nv_rcp_f32 v{t+2}, v{t+2}")
        pkmul(n, n, t + 2, "op_sel_hi:[1,0]")
        round2(n, n, t + 3)
    def ln_full(raw, u, x, n, t):
        for k in range(8): unpack2(u + 2 * k, raw + k)
        def red(src, d):
            for st in (8, 4, 2):
                for k in range(0, st, 2): pkadd(raw + k, src + k, src + st + k)
                src = raw
            a(f"v_add_f32 v{d}, v{raw}, v{raw+1}")
            for k in (8, 4, 2, 1): a(f"v_add_f32_dpp v{d}, v{d}, v{d} row_ror:{k} {DPPM}")
            fold(32, d, t + 4, 1)
            a(f"v_mul_f32 v{d}, 0x3b000000, v{d}")
        red(u, t)
        for k in range(8): pkadd(u + 2 * k, u + 2 * k, t, NEGB)
        for k in range(8): pkmul(u + 2 * k, u + 2 * k, u + 2 * k)
        red(u, t + 1)
        ln_tail(x, n, t)
    def wloads(reg, n, vo, srdq, sbase, steps, w=4):
        for m in range(n):
            a(f"s_add_u32 s29, {sbase}, {steps[m]}")
            a(f"buffer_load_dwordx{w} v[{reg+w*m}:{reg+w*m+w-1}], {vo}, {srdq}, s29 offen {nt}")
    def fix64(base, t, after=None, n=8):
        for m in range(n):
            if after is not None: a(f"s_waitcnt vmcnt({after + n - 1 - m})")
            r = base + 4 * m
            a(f"v_mov_b32 v{t}, v{r}\nv_mov_b32 v{t+1}, v{r+1}")
            a(f"v_mov_b32_dpp v{r}, v{r+2} row_ror:8 row_mask:0xf bank_mask:0xc\nv_mov_b32_dpp v{r+1}, v{r+3} row_ror:8 row_mask:0xf bank_mask:0xc")
            a(f"v_mov_b32_dpp v{r+2}, v{t} row_ror:8 row_mask:0xf bank_mask:0x3\nv_mov_b32_dpp v{r+3}, v{t+1} row_ror:8 row_mask:0xf bank_mask:0x3")
    def fix128(base):
        for m in range(8):
            r = base + 8 * m
            a(f"v_swap_b32 v{r+2}, v{r+4}\nv_swap_b32 v{r+3}, v{r+5}")
    def vo64(dst, rowbytes, t):
        a(f"""v_lshrrev_b32 v{t}, 3, v2
        v_lshl_add_u32 v{t}, v1, 4, v{t}
        v_mul_u32_u24 v{t}, {rowbytes}, v{t}
        v_and_b32 v{dst}, 7, v2
        v_lshl_add_u32 v{dst}, v{dst}, 4, v{t}""")

    sec('entry')
    a(f"""s_cmp_ge_u32 s2, 256
    s_cbranch_scc1 L_exit
    s_load_dwordx16 s[36:51], s[0:1], 0
    s_load_dwordx8 s[52:59], s[0:1], 64
    s_load_dwordx4 s[60:63], s[0:1], 96""")
    if stamps:
        a("s_memrealtime s[86:87]\nv_mov_b32 v166, 0")
    a(f"""v_lshrrev_b32 v1, 6, v0
    v_and_b32 v0, 63, v0
    v_readfirstlane_b32 s3, v1
    v_lshrrev_b32 v1, 4, v0
    v_and_b32 v2, 15, v0
    v_lshlrev_b32 v3, 4, v0
    s_and_b32 s4, s2, 7
    s_lshr_b32 s5, s2, 3
    s_mov_b32 s69, 0xffffff00
    s_mov_b32 s70, 0xffff0000
    s_cmp_lg_u32 s3, 2
    s_cbranch_scc1 L_nopf
    s_getpc_b64 s[28:29]
    L_pc:
    s_min_u32 s30, s5, (L_exit-L_pc)/1024-1
    s_lshl_b32 s30, s30, 10
    s_add_u32 s30, s30, (L_exit-L_pc)&0x3f0
    v_add_u32 v12, s30, v3
    global_load_dwordx4 v[160:163], v12, s[28:29]
    L_nopf:
    s_cmp_lt_u32 s5, 8
    s_cbranch_scc1 L_W
    s_and_b32 s6, s5, 1
    s_sub_u32 s7, s5, 8
    s_lshr_b32 s7, s7, 1
    s_mul_i32 s28, s7, 10
    s_min_u32 s29, s7, 8
    s_add_u32 s28, s28, s29
    s_lshl_b32 s28, s28, 13
    s_lshl_b32 s29, s6, 3
    s_add_u32 s29, s29, s4
    s_lshl_b32 s29, s29, 23
    s_add_u32 s28, s28, s29
    s_add_u32 s28, s28, 0x700000
    s_cmp_lt_u32 s7, 8
    s_cselect_b32 s35, 11, 10
    s_cmp_gt_u32 s3, 1
    s_cbranch_scc1 L_T
    s_cmp_eq_u32 s3, 1
    s_cbranch_scc1 L_X
    v_lshlrev_b32 v12, 2, v1
    v_xor_b32 v12, v12, v2
    v_lshlrev_b32 v12, 4, v12
    v_lshl_add_u32 v4, v1, 8, v12
    v_xor_b32 v5, 16, v4
    v_xor_b32 v6, 32, v4
    v_xor_b32 v7, 48, v4
    s_mov_b32 s31, {KT}
    s_mov_b32 s32, 3
    s_mov_b32 s30, {2*t1-3}
    s_lshl_b32 s33, s35, 1
    s_sub_u32 s33, s33, {2*t1}
    s_setprio 3
    s_waitcnt lgkmcnt(0)
    s_load_dword s83, s[62:63], 0""")
    if stamps: a("s_mov_b32 s46, s3")
    srd(8, P_K, 0x8000000)
    srd(12, P_WQ, 512 * 8192)
    a(f"""s_cmp_eq_u32 s35, 10
    s_cbranch_scc1 L_k0
    s_sub_u32 s29, s5, 8
    s_lshl_b32 s29, s29, 18
    s_lshl_b32 s34, s4, 10
    s_add_u32 s29, s29, s34
    v_lshrrev_b32 v12, 3, v0
    v_and_b32 v13, 7, v0
    v_lshlrev_b32 v13, 7, v13
    v_lshl_add_u32 v12, v12, 13, v13""")
    for k in range(npq):
        a(f"buffer_load_dword v161, v12, {SB}, s29 offen\ns_add_u32 s29, s29, 65536")
    if pqw:
        stamp(5)
        a("s_waitcnt vmcnt(0)")
        stamp(2)
    for nm, cnt, win in (("L_k0", "s32", 63), ("L_k1", "s30", win1), ("L_k2", "s33", win2)):
        a(f"{nm}:\ns_mov_b32 m0, s31\ns_add_u32 s31, s31, 4096")
        for j in range(4):
            a(f"buffer_load_dwordx4 v{4+j}, {SA}, s28 offen offset:{j*1024} {nt} lds")
            if win < 63 and j & 1: a(f"s_waitcnt vmcnt({win-2})")
        a(f"s_add_u32 s28, s28, 4096\ns_sub_u32 {cnt}, {cnt}, 1\ns_cmp_lg_u32 {cnt}, 0\ns_cbranch_scc1 {nm}")
        if nm == "L_k0": a("s_barrier")
        if nm == "L_k1":
            a(f"v_mov_b32 v30, {FLG}\nds_write_b32 v30, v30 offset:{QGO}")
            srd(12, P_WO, 4096 * 1024); srd(20, P_WM, 512 * 6144)
            a(f"""s_sub_u32 s32, s5, 8
            s_mul_i32 s29, s32, {22*1024}
            s_min_u32 s29, s29, {(512-24)*1024}
            s_lshl_b32 s30, s4, 19
            s_add_u32 s29, s29, s30
            v_lshlrev_b32 v27, 7, v0""")
            for k in range(npo): a(f"s_waitcnt vmcnt({max(0, min(win1, 32) - 8*(k+1)) + k})\nbuffer_load_dword v161, v27, {SB}, s29 offen\ns_add_u32 s29, s29, 8192")
            if pml: a(f"""s_mul_i32 s29, s32, 22
            s_min_u32 s29, s29, {512-22}
            s_mul_i32 s29, s29, 6144
            s_lshl_b32 s30, s4, 7
            s_add_u32 s29, s29, s30
            s_add_u32 s29, s29, 2048
            v_lshrrev_b32 v27, 2, v0
            v_min_u32 v12, 5, v27
            v_mul_u32_u24 v27, 6144, v27
            v_mul_u32_u24 v12, 6144, v12
            v_and_b32 v13, 3, v0
            v_lshl_add_u32 v27, v13, 10, v27
            v_lshl_add_u32 v12, v13, 10, v12
            s_add_u32 s30, s29, {16*6144}
            buffer_load_dword v161, v27, {SC}, s29 offen
            buffer_load_dword v161, v12, {SC}, s30 offen""")
    a(f"v_mov_b32 v30, {FLG}")
    for d in range(vd):
        if d and vx < 8: a(f"s_waitcnt vmcnt({max(0, min(win2, 32) - 8*d)})")
        a(f"ds_write_b32 v30, v30 offset:{TOK+4*d}")
    a(f"s_waitcnt vmcnt(0)\nds_write_b32 v30, v30 offset:{KRDY}")
    a("s_branch L_H0")
    sec('H')
    a("L_H0:")
    stamp(1)
    srd(16, P_WS, WS_BYTES)
    tagsetup()
    a(f"""s_mov_b32 s34, 0x07060302
    v_and_b32 v12, 3, v2
    v_lshrrev_b32 v13, 2, v2
    v_lshlrev_b32 v14, 3, v0
    v_mul_u32_u24 v25, 48, v13
    v_lshl_add_u32 v27, v1, 2, v12
    v_lshl_add_u32 v27, v13, 5, v27
    v_lshlrev_b32 v27, 4, v27
    v_lshlrev_b32 v28, 4, v13
    v_min_u32 v26, 10, v0
    v_lshlrev_b32 v26, 2, v26
    v_add_u32 v29, {KT}, v3
    v_add_u32 v31, {KT+7*8192}, v3
    v_mov_b32 v22, {LOG2E}
    s_mul_i32 s72, s4, 24
    s_mul_i32 s73, s6, 12
    s_add_u32 s72, s72, s73
    s_add_u32 s72, s72, s7
    s_lshl_b32 s73, s72, 11
    s_add_u32 s73, s73, {HA}
    s_lshl_b32 s72, s72, 7
    s_add_u32 s72, s72, {HML}
    s_add_u32 s74, s72, {LOC}
    s_add_u32 s75, s73, {LOC}""")
    if dry: a("s_mov_b64 exec, 0")
    a("L_H:")
    a(f"""L_f1:
    ds_read_b32 v16, v26 offset:{FLG+FL1}""")
    for k in range(3): a(f"ds_read_b128 v[{32+4*k}:{35+4*k}], v25 offset:{MX+16*k}")
    for k in range(3): a(f"ds_read_b128 v[{88+4*k}:{91+4*k}], v25 offset:{LS+16*k}")
    a("""s_waitcnt lgkmcnt(0)
    v_cmp_eq_u32 vcc, 0, v16
    s_cbranch_vccz L_f1d
    s_sleep 1
    s_branch L_f1
    L_f1d:""")
    stamp(3)
    a("""v_max3_f32 v16, v32, v33, v34
    v_max3_f32 v17, v35, v36, v37
    v_max3_f32 v18, v38, v39, v40
    v_max3_f32 v16, v16, v41, v42
    v_max3_f32 v16, v16, v17, v18""")
    for k in range(6): pkadd(32 + 2 * k, 32 + 2 * k, 16, NEGB)
    for k in range(6): pkmul(32 + 2 * k, 32 + 2 * k, 22, "op_sel_hi:[1,0]")
    for k in range(11): a(f"v_exp_f32 v{32+k}, v{32+k}")
    pkmul(18, 32, 88)
    for k in range(1, 5): a(f"v_pk_fma_f32 v[18:19], {pr(32+2*k)}, {pr(88+2*k)}, v[18:19]")
    a("""v_add_f32 v17, v18, v19
    v_fmac_f32 v17, v42, v98
    v_mov_b32 v18, 0
    v_mov_b32 v19, 0""")
    encode(16)
    a(f"""s_cbranch_execz L_col
    s_mov_b64 exec, 0x1111""")
    if dual: a(f"buffer_store_dwordx4 v[16:19], v28, {SW}, s74 offen")
    a(f"""buffer_store_dwordx4 v[16:19], v28, {SW}, s72 offen sc1
    s_mov_b64 exec, -1""")
    stamp(4)
    a("L_col:")
    if stamps: a("s_waitcnt lgkmcnt(0)")
    def colrd(t):
        r = 64 + 12 * (t & 1)
        base, off = ("v29", t * 8192) if t < 7 else ("v31", (t - 7) * 8192)
        a(f"ds_read_b32 v{r+8}, v30 offset:{4*t}\nds_read_b128 v[{r}:{r+3}], {base} offset:{off}\nds_read_b128 v[{r+4}:{r+7}], {base} offset:{off+1024}")
    colrd(0)
    for t in range(11):
        r = 64 + 12 * (t & 1)
        if t < 10:
            colrd(t + 1); a("s_waitcnt lgkmcnt(3)")
        else:
            a("s_waitcnt lgkmcnt(0)")
        a(f"L_cchk{t}:\nv_cmp_eq_u32 vcc, 0, v{r+8}\ns_cbranch_vccz L_cadd{t}")
        colrd(t)
        a(f"s_waitcnt lgkmcnt(0)\ns_branch L_cchk{t}\nL_cadd{t}:")
        for k in range(4):
            sc = pr(32 + (t & ~1))
            if t == 0: a(f"v_pk_mul_f32 {pr(48+2*k)}, {pr(r+2*k)}, {sc} op_sel_hi:[1,0]")
            else: a(f"v_pk_fma_f32 {pr(48+2*k)}, {pr(r+2*k)}, {sc}, {pr(48+2*k)} " + ("op_sel:[0,1,0] op_sel_hi:[1,1,1]" if t & 1 else "op_sel_hi:[1,0,1]"))
    encode(48); encode(52)
    a("s_cbranch_execz L_dryH")
    if dual: a(f"buffer_store_dwordx4 v[48:51], v27, {SW}, s75 offen\nbuffer_store_dwordx4 v[52:55], v27, {SW}, s75 offen offset:256")
    a(f"""buffer_store_dwordx4 v[48:51], v27, {SW}, s73 offen sc1
    buffer_store_dwordx4 v[52:55], v27, {SW}, s73 offen offset:256 sc1
    ds_write_b32 v30, v30 offset:{OST}
    s_waitcnt lgkmcnt(0)""")
    stamp(6)
    a("s_branch L_end\nL_dryH:\ns_mov_b64 exec, -1\ns_branch L_H")

    def spin(off, areg, t, sl=1):
        L, D = lab("sp"), lab("spd")
        a(f"""{L}:
        ds_read_b32 v{t}, v{areg} offset:{off}
        s_waitcnt lgkmcnt(0)
        v_cmp_eq_u32 vcc, 0, v{t}
        s_cbranch_vccz {D}
        s_sleep {sl}
        s_branch {L}
        {D}:""")
    sec('T')
    a(f"""L_T:
    s_sub_u32 s3, s3, 2
    v_lshrrev_b32 v13, 2, v2
    v_mul_u32_u24 v25, 48, v13
    s_lshl_b32 s29, s3, 2
    v_add_u32 v26, s29, v25
    v_mov_b32 v30, s29
    v_mov_b32 v16, 0
    v_mov_b32 v17, 0
    v_mov_b32 v18, 0
    v_mov_b32 v19, 0
    v_mov_b32 v28, {FLG}
    ds_write_b32 v30, v16 offset:{FLG}
    ds_write_b32 v30, v16 offset:{FLG+FL1}
    ds_write_b32 v30, v16 offset:{FLG+TOK}
    ds_write_b32 v30, v16 offset:{FLG+TOK+4}
    ds_write_b128 v28, v[16:19] offset:{KRDY}
    s_lshl_b32 s31, s3, 13
    s_add_u32 s28, s28, s31
    s_add_u32 s30, s28, 4096
    s_add_u32 s31, s31, {KT}
    s_mov_b32 s74, 0x11111111
    s_mov_b32 s75, 0x11111111
    s_mov_b32 s76, 0x22222222
    s_mov_b32 s77, 0x22222222
    s_mov_b32 s78, 0x44444444
    s_mov_b32 s79, 0x44444444
    s_mov_b32 s80, 0x88888888
    s_mov_b32 s81, 0x88888888
    s_mov_b32 s33, 0x05040100
    s_mov_b32 s34, 0x07060302
    v_and_b32 v12, 3, v2
    v_lshl_add_u32 v14, v12, 2, v13
    v_lshlrev_b32 v14, 8, v14
    v_xor_b32 v15, v1, v2
    v_lshl_add_u32 v14, v15, 4, v14
    v_add_u32 v4, s31, v14
    v_xor_b32 v5, 64, v4
    v_xor_b32 v6, 0x80, v4
    v_xor_b32 v7, 0xc0, v4
    v_lshlrev_b32 v15, 8, v13
    v_lshl_add_u32 v15, v1, 4, v15
    v_add_u32 v29, s31, v3
    v_mov_b32 v31, 1
    v_mov_b32 v20, 0x3db504f3
    v_mov_b32 v22, {LOG2E}
    s_waitcnt lgkmcnt(0)
    s_barrier""")
    if stamps: a("s_add_u32 s46, s3, 1")
    srd(12, P_V, 0x8000000)
    a("s_load_dword s83, s[62:63], 0")
    srd(16, P_WS, WS_BYTES)
    a(f"""s_lshl_b32 s32, s4, 1
    s_add_u32 s32, s32, s6
    s_lshl_b32 s32, s32, 11
    s_add_u32 s32, s32, {HQ}
    v_lshlrev_b32 v14, 3, v0""")
    tagsetup()
    a(f"s_cmp_lt_u32 s3, {qp[0]}\ns_cbranch_scc1 L_nq\ns_cmp_gt_u32 s3, {qp[1]}\ns_cbranch_scc1 L_nq")
    if qgo: spin(QGO, 28, 16, 2)
    poll([f"buffer_load_dwordx4 v[144:147], v27, {SW}, s32 offen sc1", f"buffer_load_dwordx4 v[148:151], v27, {SW}, s32 offen offset:1024 sc1"], [144, 148], 16, two=(27, 3))
    stamp(7)
    a(f"""v_perm_b32 v16, v145, v144, s34
    v_perm_b32 v17, v147, v146, s34
    v_perm_b32 v18, v149, v148, s34
    v_perm_b32 v19, v151, v150, s34
    ds_write_b64 v14, v[16:17] offset:{QL}
    ds_write_b64 v14, v[18:19] offset:{QL+512}
    ds_write_b32 v28, v28 offset:{QRDY}""")
    a("L_nq:")
    if dry: a("s_cmp_lg_u32 s3, 5\ns_cbranch_scc1 L_att\ns_mov_b64 exec, 0")
    a(f"""L_att:
    s_mov_b32 s72, 0
    s_cbranch_execz L_k
    s_setprio 2
    L_ev:
    ds_read_b32 v16, v30 offset:{FLG+TOK}
    ds_read_b64 v[18:19], v28 offset:{KRDY}
    s_waitcnt lgkmcnt(0)
    s_bitcmp1_b32 s72, 0
    s_cbranch_scc1 L_ev1
    v_cmp_ne_u32 vcc, 0, v16
    s_cbranch_vccnz L_v
    L_ev1:
    s_bitcmp1_b32 s72, 1
    s_cbranch_scc1 L_ev2
    v_cmp_ne_u32 vcc, 0, v18
    s_cbranch_vccnz L_k
    s_branch L_ev3
    L_ev2:
    s_bitcmp1_b32 s72, 2
    s_cbranch_scc1 L_ev3
    v_cmp_ne_u32 vcc, 0, v19
    s_cbranch_vccnz L_sc
    L_ev3:
    s_sleep {evs}
    s_branch L_ev
    L_v:""")
    for j in range(8):
        a(f"buffer_load_dwordx4 v[{32+4*j}:{35+4*j}], v3, {SB}, {'s28' if j < 4 else 's30'} offen offset:{(j&3)*1024} {nt}")
    stamp(1)
    a(f"""s_add_u32 s29, s3, {vd}
    s_cmp_gt_u32 s29, s35
    s_cbranch_scc1 L_v2
    s_waitcnt vmcnt({vx})
    ds_write_b32 v30, v31 offset:{FLG+TOK+4*vd}
    L_v2:
    s_bitcmp1_b32 s72, 2
    s_cbranch_scc1 L_pv
    s_bitset1_b32 s72, 0
    s_setprio 0
    s_branch L_ev
    L_k:""")
    for i in range(4):
        for t in range(2):
            a(f"ds_read_b128 v[{96+16*t+4*i}:{99+16*t+4*i}], v{4+i} offset:{t*4096}")
    stamp(2)
    a("s_bitset1_b32 s72, 1\ns_cbranch_execnz L_ev\nL_sc:")
    stamp(3)
    for i in range(4):
        a(f"ds_read_b128 v[{128+4*i}:{131+4*i}], v15 offset:{QL+64*i}")
    for i in range(4):
        a(f"s_waitcnt lgkmcnt({0 if stamps else 3-i})")
        for t in range(2):
            c = "0" if i == 0 else f"v[{152+4*t}:{155+4*t}]"
            a(f"v_mfma_f32_16x16x32_bf16 v[{152+4*t}:{155+4*t}], v[{96+16*t+4*i}:{99+16*t+4*i}], v[{128+4*i}:{131+4*i}], {c}")
    round4(152, 152, 16); round4(156, 156, 18)
    for k in range(4): pkmul(152 + 2 * k, 152 + 2 * k, 20, "op_sel_hi:[1,0]")
    round4(152, 152, 16); round4(156, 156, 18)
    a("""v_max3_f32 v16, v152, v153, v154
    v_max3_f32 v17, v155, v156, v157
    v_max3_f32 v16, v16, v158, v159
    v_max_f32 v16, v16, v17""")
    fold(16, 16, 17, 1, "v_max_f32"); fold(32, 16, 17, 1, "v_max_f32")
    a(f"ds_write_b32 v26, v16 offset:{MX}")
    for k in range(4): pkadd(152 + 2 * k, 152 + 2 * k, 16, NEGB)
    for k in range(4): pkmul(152 + 2 * k, 152 + 2 * k, 22, "op_sel_hi:[1,0]")
    for k in range(8): a(f"v_exp_f32 v{152+k}, v{152+k}")
    add4(96, 152, 156); pkadd(96, 96, 98)
    a("v_add_f32 v17, v96, v97")
    fold(16, 17, 18, 1); fold(32, 17, 18, 1)
    a(f"ds_write_b32 v26, v17 offset:{LS}\nds_write_b32 v30, v31 offset:{FLG+FL1}")
    for k in range(4): a(f"v_cvt_pk_bf16_f32 v{96+k}, v{152+2*k}, v{153+2*k}")
    for s in range(4):
        for k in range(4): a(f"v_cndmask_b32 v{128+4*s+k}, 0, v{96+k}, s[{74+2*s}:{75+2*s}]")
    stamp(4)
    a("""s_cbranch_execz L_pv
    s_bitset1_b32 s72, 2
    s_bitcmp1_b32 s72, 0
    s_cbranch_scc0 L_ev
    L_pv:""")
    for p in range(4):
        a(f"s_waitcnt vmcnt({6-2*p})")
        if p == 3: stamp(5)
        for i in range(8):
            a(f"v_perm_b32 v{64+4*i+p}, v{32+4*(2*p+1)+(i>>1)}, v{32+4*(2*p)+(i>>1)}, {'s34' if i & 1 else 's33'}")
    for aa in range(2):
        for s in range(4):
            i = 2 * s + aa
            c = "0" if s == 0 else f"v[{152+4*aa}:{155+4*aa}]"
            a(f"v_mfma_f32_16x16x32_bf16 v[{152+4*aa}:{155+4*aa}], v[{64+4*i}:{67+4*i}], v[{128+4*s}:{131+4*s}], {c}")
    a(f"""ds_write_b128 v29, v[152:155]
    ds_write_b128 v29, v[156:159] offset:1024
    ds_write_b32 v30, v31 offset:{FLG}
    s_waitcnt lgkmcnt(0)""")
    stamp(6)
    a(f"""s_cbranch_execnz L_pf
    s_mov_b64 exec, -1
    s_branch L_att
    L_pf:""")
    if pff:
        a(f"""s_cmp_lg_u32 s3, 0
        s_cbranch_scc1 L_F0
        s_sub_u32 s28, s5, 8
        s_and_b32 s29, s28, 7
        s_lshl_b32 s30, s35, 2
        v_mov_b32 v30, s30
        s_cmp_ge_u32 s28, 16
        s_cbranch_scc1 L_pfd
        s_cmp_lt_u32 s28, 8
        s_cselect_b32 s20, s{P_WG}, s{P_WU}
        s_cselect_b32 s21, s{P_WG+1}, s{P_WU+1}
        s_mov_b32 s22, {512*3584}
        s_cmp_lt_u32 s4, 4
        s_cselect_b32 s31, 3, 2
        v_and_b32 v14, 3, v0
        v_min_u32 v14, s31, v14
        v_lshrrev_b32 v13, 2, v0
        v_mul_u32_u24 v13, 3584, v13
        v_lshl_add_u32 v13, v14, 10, v13
        s_mul_i32 s30, s29, {64*3584}
        s_lshl_b32 s31, s4, 7
        s_add_u32 s30, s30, s31
        s_mov_b32 s31, {16*3584}
        s_branch L_pfg
        L_pfd:
        s_mov_b32 s20, s{P_WD}
        s_mov_b32 s21, s{P_WD+1}
        s_mov_b32 s22, {1792*1024}
        v_lshlrev_b32 v13, 7, v0
        s_lshr_b32 s30, s29, 1
        s_lshl_b32 s30, s30, 3
        s_add_u32 s30, s30, s4
        s_lshl_b32 s30, s30, 1
        s_and_b32 s29, s29, 1
        s_add_u32 s30, s30, s29
        s_lshl_b32 s30, s30, 15
        s_mov_b32 s31, 8192
        L_pfg:
        s_mov_b32 s23, 0x00020000""")
        spin(FLG + TOK - 4 * pk, 30, 16)
        for k in range(4):
            a(f"buffer_load_dword v161, v13, {SC}, s30 offen\ns_add_u32 s30, s30, s31")
            if k == 1: a("s_waitcnt vmcnt(1)")
        if stamps: a("s_waitcnt vmcnt(0)")
        stamp(7)
    a("s_branch L_F0")


    sec('Me')
    a(f"""L_X:
    s_mov_b32 s3, 12
    s_cmp_eq_u32 s35, 11
    s_cbranch_scc1 L_T
    s_setprio 3
    s_sub_u32 s33, s2, 192
    s_and_b32 s6, s33, 15
    s_lshr_b32 s7, s33, 4
    v_lshlrev_b32 v12, 3, v2
    v_and_b32 v13, 1, v1
    v_lshl_add_u32 v13, v13, 10, v12
    v_lshrrev_b32 v14, 5, v0
    v_lshl_add_u32 v61, v14, 7, v13
    s_lshl_b32 s28, s7, 8
    v_mul_u32_u24 v14, {16*6144}, v1
    v_add_u32 v14, v14, v12
    s_mul_i32 s30, s7, {128*6144}
    s_lshl_b32 s31, s6, 7
    s_add_u32 s30, s30, s31
    s_waitcnt lgkmcnt(0)
    s_load_dword s83, s[62:63], 0""")
    if stamps: a("s_mov_b32 s46, 11")
    srd(20, P_C, 2048); srd(8, P_WM, 512 * 6144)
    a(f"buffer_load_dwordx2 v[52:53], v61, {SC}, s28 offen")
    wloads(64, 32, "v14", SA, "s30", [((jj >> 4) * 64 + (jj & 15)) * 6144 for jj in range(32)], w=2)
    a(f"""v_lshrrev_b32 v13, 2, v2
    v_mul_u32_u24 v25, 48, v13
    v_mov_b32 v16, 0
    v_mov_b32 v17, 0
    v_mov_b32 v18, 0
    v_mov_b32 v19, 0
    v_mov_b32 v20, 0xff800000
    v_add_u32 v29, {KT+10*8192}, v3
    v_mov_b32 v63, {FLG}
    ds_write_b32 v25, v20 offset:{MX+40}
    ds_write_b32 v25, v16 offset:{LS+40}
    ds_write_b128 v29, v[16:19]
    ds_write_b128 v29, v[16:19] offset:1024
    ds_write_b32 v63, v63 offset:40
    ds_write_b32 v63, v63 offset:{FL1+40}
    s_waitcnt lgkmcnt(0)
    s_barrier""")
    stamp(1)
    srd(16, P_WS, WS_BYTES)
    selsetup(); tagsetup()
    a(f"""v_and_b32 v60, 31, v0
    v_lshlrev_b32 v60, 4, v60
    s_lshl_b32 s73, s6, 2
    s_add_u32 s73, s73, s7
    s_lshl_b32 s73, s73, 9
    s_add_u32 s73, s73, {HM_E}
    v_lshlrev_b32 v58, 3, v0
    v_bfe_u32 v59, v2, 2, 1
    v_lshlrev_b32 v59, 7, v59
    v_lshl_add_u32 v59, v1, 5, v59
    s_waitcnt vmcnt(32)""")
    unpack4(32, 52)
    silu(4, 32, 32, 36)
    a(f"""v_cvt_pk_bf16_f32 v56, v32, v33
    v_cvt_pk_bf16_f32 v57, v34, v35
    ds_write_b64 v58, v[56:57] offset:{SH+4096}
    ds_read_b128 v[16:19], v59 offset:{SH+4096}
    ds_read_b128 v[20:23], v59 offset:{SH+4096+16}
    ds_read_b128 v[24:27], v59 offset:{SH+4096+256}
    ds_read_b128 v[28:31], v59 offset:{SH+4096+272}
    s_waitcnt lgkmcnt(0)""")
    gemv(16, 16, [64], [44], waits=[30 - 2 * m for m in range(16)])
    encode(44)
    a(f"""s_mov_b32 exec_hi, 0
    buffer_store_dwordx4 v[44:47], v60, {SW}, s73 offen sc1
    s_mov_b32 exec_hi, -1""")
    stamp(2)
    a("s_branch L_X2")

    sec('W')
    a(f"""L_W:
    s_cmp_ge_u32 s3, 8
    s_cbranch_scc1 L_Wx
    v_lshlrev_b32 v12, 3, v2
    v_and_b32 v14, 1, v1
    v_lshl_add_u32 v12, v14, 10, v12
    v_lshrrev_b32 v15, 5, v0
    v_lshl_add_u32 v12, v15, 2, v12
    s_lshl_b32 s32, s3, 7
    v_lshlrev_b32 v14, 10, v14
    v_lshl_add_u32 v14, v15, 9, v14
    v_lshl_add_u32 v14, v2, 5, v14
    v_and_b32 v60, 31, v0
    v_lshlrev_b32 v53, 1, v60
    v_lshl_add_u32 v13, v15, 10, v53
    s_lshr_b32 s7, s5, 2
    s_lshl_b32 s7, s7, 8
    s_lshl_b32 s29, s3, 5
    s_add_u32 s7, s7, s29
    s_lshl_b32 s29, s7, 1
    s_waitcnt lgkmcnt(0)
    s_load_dword s83, s[62:63], 0""")
    if stamps: a("s_mov_b32 s46, s3")
    srd(24, P_X, 2048); srd(20, P_C, 2048)
    a(f"""buffer_load_dword v54, v12, {SD}, s32 offen
    buffer_load_dwordx4 v[112:115], v14, {SD}, 0 offen
    buffer_load_dwordx4 v[116:119], v14, {SD}, 0 offen offset:16
    buffer_load_ushort v55, v13, {SC}, s29 offen
    v_lshl_add_u32 v53, v15, 6, v53""")
    srd(12, P_WQ, 512 * 8192)
    vo64(52, 8192, 14)
    a("""s_lshl_b32 s31, s3, 19
    s_lshl_b32 s29, s4, 10
    s_add_u32 s31, s31, s29
    s_lshl_b32 s29, s5, 7
    s_add_u32 s31, s31, s29""")
    a(f"s_cmp_ge_u32 s3, {wsplit}\ns_cbranch_scc1 L_nw1")
    wloads(64, 8, "v52", SB, "s31", [2 * m * 8192 for m in range(8)])
    a("L_nw1:")
    srd(16, P_WS, WS_BYTES)
    selsetup(); shufsetup()
    a(f"""v_add_u32 v53, s28, v53
    v_lshlrev_b32 v60, 4, v60
    s_lshl_b32 s29, s3, 9
    v_add_u32 v20, s29, v60
    v_lshrrev_b32 v61, 5, v0
    v_lshl_add_u32 v61, v61, 14, v60
    s_lshl_b32 s30, s3, 11
    s_add_u32 s30, s30, {HM_E}""")
    tagsetup()
    a(f"s_waitcnt vmcnt(8)\ns_cmp_lt_u32 s3, {wsplit}\ns_cbranch_scc1 L_nw2\ns_waitcnt vmcnt(0)\nL_nw2:")
    unpack2(164, 54)
    ln_full(112, 120, 164, 16, 36)
    stamp(5)
    a(f"s_cmp_lt_u32 s3, {wsplit}\ns_cbranch_scc1 L_nw3")
    wloads(64, 8, "v52", SB, "s31", [2 * m * 8192 for m in range(8)])
    a("L_nw3:\ns_barrier\nL_Q:")
    def preq():
        a("v_lshlrev_b32 v32, 16, v55")
        silu(1, 32, 32, 36)
        a("v_cvt_pk_bf16_f32 v32, v32, v32\nds_write_b16 v53, v32 offset:256")
        fix64(64, 36, after=4); stamp(2)
    spoll([(f"buffer_load_dwordx4 v[{96+4*k}:{99+4*k}], v61, {SW}, s30 offen offset:{512*k} sc1", 96 + 4 * k, None) for k in range(4)], 32, pre=preq)
    stamp(3)
    add4(96, 96, 100); add4(104, 104, 108); add4(96, 96, 104)
    a("v_permlane32_swap_b32 v96, v98\nv_permlane32_swap_b32 v97, v99")
    round4(96, 96, 36)
    a("v_pk_add_f32 v[98:99], v[98:99], 1.0 op_sel_hi:[1,0]")
    round2(98, 98, 36)
    pkmul(98, 98, 16)
    round2(98, 98, 36)
    pkadd(98, 98, 96)
    a("v_cvt_pk_bf16_f32 v55, v98, v99")
    shuffle(55)
    gemv(8, 24, [64], [44])
    a(f"ds_write_b128 v20, v[44:47] offset:{RED}")
    barrier_nd()
    a("s_cbranch_execz L_exit")
    srd(8, P_WM, 512 * 6144); srd(12, P_WO, 4096 * 1024)
    a(f"""s_mul_i32 s30, s7, 6144
    s_and_b32 s28, s5, 3
    s_lshl_b32 s29, s28, 10
    s_add_u32 s30, s30, s29
    s_lshl_b32 s29, s4, 7
    s_add_u32 s30, s30, s29
    s_add_u32 s30, s30, 2048
    v_lshrrev_b32 v12, 3, v2
    v_lshl_add_u32 v14, v1, 3, v12
    v_mul_u32_u24 v14, 6144, v14
    v_and_b32 v15, 7, v2
    v_lshlrev_b32 v15, 4, v15
    v_add_u32 v14, v14, v15
    v_lshl_add_u32 v13, v1, 2, v12
    v_lshl_add_u32 v13, v13, 13, v15
    s_lshl_b32 s31, s4, 9
    s_lshr_b32 s28, s3, 1
    s_lshl_b32 s29, s28, 7
    s_add_u32 s31, s31, s29
    s_and_b32 s29, s3, 1
    s_add_u32 s31, s31, s29
    s_lshl_b32 s31, s31, 10
    s_lshl_b32 s29, s5, 7
    s_add_u32 s31, s31, s29
    s_barrier""")
    wloads(128, 4, "v14", SA, "s30", [2 * m * 6144 for m in range(4)])
    wloads(64, 8, "v13", SB, "s31", [(16 * (m & 1) + 2 * (m >> 1)) * 1024 for m in range(8)])
    a(f"""v_lshlrev_b32 v61, 4, v2
    v_lshl_add_u32 v61, v1, 11, v61
    s_mul_i32 s30, s4, {24*2048}
    s_lshl_b32 s29, s3, 8
    s_add_u32 s30, s30, s29
    s_add_u32 s30, s30, {HA}
    v_and_b32 v13, 3, v2
    v_min_u32 v14, 2, v13
    v_bfe_u32 v15, v2, 2, 1
    v_mul_u32_u24 v52, 12, v15
    v_lshl_add_u32 v52, v14, 2, v52
    v_add_u32 v52, v52, v1
    v_lshlrev_b32 v52, 7, v52
    s_mul_i32 s31, s4, {24*128}
    s_lshl_b32 s29, s28, 4
    s_add_u32 s31, s31, s29
    s_add_u32 s31, s31, {HML}
    s_mov_b32 s74, 0x77777777
    s_mov_b32 s75, 0x77777777
    s_mov_b32 s82, 0
    s_lshl_b32 s28, s3, 9
    s_add_u32 s29, s28, {SH}
    v_lshlrev_b32 v54, 6, v15
    v_lshl_add_u32 v54, v1, 4, v54
    v_add_u32 v54, s29, v54
    ds_read_b128 v[24:27], v54 offset:256""")
    for j in range(1, 6): a(f"s_add_u32 s{75+j}, s30, {j*8192}")
    fix64(128, 36, after=8, n=4)
    a("s_waitcnt lgkmcnt(0)")
    gemv(4, 24, [128], [44])
    a(f"ds_write_b128 v20, v[44:47] offset:{RED+4096}\ns_waitcnt lgkmcnt(0)\ns_barrier")
    fix64(64, 36, after=0)
    stamp(7)
    a("L_WO:")
    def scales():
        stamp(1)
        a(f"""v_max_f32_dpp v36, v48, v48 quad_perm:[1,0,3,2] {DPPM}
        v_max_f32_dpp v36, v36, v36 quad_perm:[2,3,0,1] {DPPM}""")
        fold(16, 36, 33, 1, "v_max_f32"); fold(32, 36, 33, 1, "v_max_f32")
        a(f"""v_sub_f32 v36, v48, v36
        v_mul_f32 v36, {LOG2E}, v36
        v_exp_f32 v36, v36
        v_cndmask_b32 v49, 0, v49, s[74:75]
        v_mul_f32 v33, v36, v49
        v_add_f32_dpp v33, v33, v33 quad_perm:[1,0,3,2] {DPPM}
        v_add_f32_dpp v33, v33, v33 quad_perm:[2,3,0,1] {DPPM}""")
        fold(16, 33, 34, 1); fold(32, 33, 34, 1)
        a("v_rcp_f32 v33, v33\nv_mul_f32 v36, v36, v33")
        for j in range(6): a(f"v_mov_b32_dpp v{24+j}, v36 row_newbcast:{4*(j//3)+j%3} {DPPM}")
    OBs = [96 + 4 * j for j in range(6)]
    oload = lambda j: f"buffer_load_dwordx4 v[{OBs[j]}:{OBs[j]+3}], v22, {SW}, {'s30' if j == 0 else 's%d' % (75+j)} offen sc1"
    def pretouch():
        a(f"v_add_u32 v22, {LOC if dual else 0}, v61")
        for j in range(6): a(oload(j))
    spoll([(f"buffer_load_dwordx4 v[48:51], v23, {SW}, s31 offen sc1", 48, scales)], 32, twos=((23, 52),), pre=pretouch)
    spoll([(oload(j), OBs[j], None) for j in range(6)], 32, twos=((22, 61),))
    stamp(6)
    for jj in range(3):
        for b in range(2):
            j = 3 * b + jj
            sc = 24 + (j & ~1)
            for h in range(2):
                d = 32 + 4 * b + 2 * h
                sel = "op_sel:[0,1,0] op_sel_hi:[1,1,1]" if j & 1 else "op_sel_hi:[1,0,1]"
                if jj == 0:
                    sel = "op_sel:[0,1] op_sel_hi:[1,1]" if j & 1 else "op_sel_hi:[1,0]"
                    a(f"v_pk_mul_f32 {pr(d)}, {pr(OBs[j]+2*h)}, {pr(sc)} {sel}")
                else:
                    a(f"v_pk_fma_f32 {pr(d)}, {pr(OBs[j]+2*h)}, {pr(sc)}, {pr(d)} {sel}")
    for k in range(4): a(f"v_permlane16_swap_b32 v{32+k}, v{36+k}")
    add4(32, 32, 36)
    halve32(32)
    a("v_cvt_pk_bf16_f32 v55, v32, v33")
    shuffle(55)
    gemv(8, 24, [64], [44])
    a(f"ds_write_b128 v20, v[44:47] offset:{RED+8192}")
    barrier_nd()
    a("s_cbranch_execz L_exit\ns_branch L_end")

    a(f"""L_R:
    s_setprio 3
    s_waitcnt lgkmcnt(0)
    s_load_dword s83, s[62:63], 0""")
    if stamps: a("s_mov_b32 s46, 9")
    srd(16, P_WS, WS_BYTES)
    a(f"""v_and_b32 v21, 31, v0
    v_lshlrev_b32 v21, 4, v21
    v_lshrrev_b32 v12, 5, v0
    v_lshl_add_u32 v21, v12, 11, v21
    v_and_b32 v52, 7, v2
    v_lshlrev_b32 v52, 5, v52
    v_lshrrev_b32 v12, 3, v2
    v_lshl_add_u32 v52, v12, 4, v52
    v_and_b32 v58, 1, v1
    v_lshl_add_u32 v62, v58, 11, v52
    v_lshl_add_u32 v63, v58, 8, v52
    s_lshl_b32 s73, s4, 12
    s_lshl_b32 s28, s5, 8
    s_add_u32 s73, s73, s28
    s_add_u32 s73, s73, {HQ}
    s_add_u32 s74, s73, {LOC}
    s_lshl_b32 s75, s4, 3
    s_add_u32 s75, s75, s5
    s_lshl_b32 s75, s75, 9
    s_add_u32 s75, s75, {HM_L}
    s_lshl_b32 s78, s5, 12
    s_lshl_b32 s29, s4, 9
    s_add_u32 s78, s78, s29
    s_add_u32 s78, s78, {HW}""")
    tagsetup()
    a("s_barrier")
    if dry: a("s_mov_b64 exec, 0")
    a("L_R1:")
    for ph in range(3):
        barrier_nd()
        for k in range(4): a(f"ds_read_b128 v[{32+4*k}:{35+4*k}], v21 offset:{RED+4096*ph+512*k}")
        a("s_waitcnt lgkmcnt(0)")
        add4(32, 32, 36); add4(40, 40, 44); add4(32, 32, 40)
        fold(32, 32, 36)
        if ph == 0: round4(32, 32, 36)
        encode(32, ph != 0)
        S = lab("rs")
        a(f"s_cbranch_execz {S}\ns_mov_b32 exec_hi, 0")
        if ph == 0 and dual: a(f"buffer_store_dwordx4 v[32:35], v62, {SW}, s74 offen")
        a(f"buffer_store_dwordx4 v[32:35], {'v62' if ph == 0 else 'v63'}, {SW}, {('s73', 's75', 's78')[ph]} offen sc1\ns_mov_b32 exec_hi, -1")
        stamp((4, 14, 9)[ph])
        if ph == 0: a("s_barrier")
        if ph == 2: a("s_branch L_end")
        a(f"{S}:")
    a("s_mov_b64 exec, -1\ns_branch L_R1")
    a("L_Wx:\ns_cmp_eq_u32 s3, 9\ns_cbranch_scc1 L_R")
    if dry:
        a("""s_waitcnt lgkmcnt(0)
        s_mov_b64 exec, 0
        s_cmp_eq_u32 s3, 8
        s_cbranch_scc1 L_Q
        s_cmp_lg_u32 s3, 10
        s_cbranch_scc1 L_exit
        s_barrier
        s_branch L_WO""")
    else:
        a("s_endpgm")

    sec('F')
    def floads():
        S = lab("nf")
        a(f"""v_and_b32 v36, 4, v2
        v_cmp_eq_u32 vcc, 0, v36
        v_mov_b32 v36, s{P_WU}
        v_mov_b32 v38, s{P_WG}
        v_cndmask_b32 v36, v36, v38, vcc
        v_mov_b32 v37, s{P_WU+1}
        v_mov_b32 v38, s{P_WG+1}
        v_cndmask_b32 v37, v37, v38, vcc
        v_lshrrev_b32 v39, 3, v2
        v_lshl_add_u32 v38, v1, 4, v39
        v_mul_u32_u24 v38, 3584, v38
        v_and_b32 v35, 3, v2
        v_lshl_add_u32 v38, v35, 4, v38
        s_mul_i32 s28, s3, {64*3584}
        s_lshl_b32 s29, s6, 6
        s_add_u32 s28, s28, s29
        v_add_u32 v38, s28, v38
        v_add_co_u32 v36, vcc, v36, v38
        v_addc_co_u32 v37, vcc, 0, v37, vcc
        s_mov_b32 s28, 7168
        s_mov_b32 s29, 0
        v_lshl_add_u32 v39, v1, 3, v39
        v_and_b32 v35, 7, v2
        v_lshlrev_b32 v35, 4, v35
        v_lshl_add_u32 v39, v39, 10, v35""")
        spin(OST, 28, 32)
        stamp(9)
        for m in range(8):
            a(f"global_load_dwordx4 v[{96+4*m}:{99+4*m}], v[36:37], off {nt}")
            if m < 7: a("v_lshl_add_u64 v[36:37], v[36:37], 0, s[28:29]")
        srd(20, P_WD, 1792 * 1024)
        a("s_lshl_b32 s28, s6, 15\ns_add_u32 s28, s28, s32")
        for m in range(4): a(f"s_add_u32 s29, s28, {2048*m}\nbuffer_load_dwordx4 v[{128+4*m}:{131+4*m}], v39, {SC}, s29 offen {nt}")
        a(f"{S}:")
    def mhook(k):
        def h():
            halve32(144 + 4 * k)
            if k == 2:
                round2(144 + 4 * k, 144 + 4 * k, 33)
                a(f"v_pk_add_f32 {pr(144+4*k)}, {pr(144+4*k)}, 1.0 op_sel_hi:[1,0]")
            round2(12 + 2 * k, 144 + 4 * k, 33)
        return h
    a(f"""L_F0:
    s_cmp_eq_u32 s35, 11
    s_cbranch_scc1 L_end
    s_cmp_ge_u32 s3, 8
    s_cbranch_scc1 L_end
    s_setprio 0
    s_sub_u32 s5, s5, 24
    s_lshr_b32 s6, s5, 1
    s_lshl_b32 s6, s6, 3
    s_add_u32 s6, s6, s4
    s_lshl_b32 s6, s6, 1
    s_and_b32 s29, s5, 1
    s_add_u32 s6, s6, s29
    s_cmp_ge_u32 s6, 56
    s_cbranch_scc1 L_end
    v_lshlrev_b32 v12, 3, v2
    v_and_b32 v14, 1, v1
    v_lshl_add_u32 v12, v14, 10, v12
    v_lshrrev_b32 v15, 5, v0
    v_lshl_add_u32 v12, v15, 2, v12
    s_lshl_b32 s32, s3, 7""")
    srd(24, P_X, 2048)
    a(f"buffer_load_dword v55, v12, {SD}, s32 offen")
    selsetup(); shufsetup()
    a(f"""v_and_b32 v60, 31, v0
    v_lshlrev_b32 v60, 4, v60
    v_lshrrev_b32 v21, 5, v0
    v_lshl_add_u32 v21, v21, 11, v60
    v_mov_b32 v60, v21
    s_mov_b32 s34, 0
    s_mov_b32 s35, -1
    v_lshrrev_b32 v12, 3, v2
    v_and_b32 v13, 3, v2
    v_bfe_u32 v15, v2, 2, 1
    s_lshl_b32 s28, s3, 9
    s_add_u32 s29, s28, {SH}
    v_lshlrev_b32 v54, 6, v15
    v_lshl_add_u32 v54, v1, 4, v54
    v_add_u32 v54, s29, v54
    v_lshrrev_b32 v16, 5, v0
    v_and_b32 v17, 1, v1
    v_lshl_add_u32 v14, v12, 2, v13
    v_lshl_add_u32 v14, v17, 3, v14
    v_lshl_add_u32 v14, v14, 1, v16
    v_lshlrev_b32 v63, 3, v15
    v_lshl_add_u32 v63, v14, 4, v63
    v_add_u32 v63, s28, v63
    v_and_b32 v14, 6, v2
    v_lshlrev_b32 v53, 3, v14
    v_lshl_add_u32 v53, v12, 3, v53
    v_and_b32 v14, 1, v2
    v_lshl_add_u32 v53, v14, 2, v53
    v_lshl_add_u32 v53, v16, 1, v53
    v_lshl_add_u32 v53, v17, 6, v53
    v_add_u32 v53, s29, v53
    v_lshl_add_u32 v160, s3, 10, v3
    v_lshl_add_u32 v14, v17, 1, v15
    v_mul_u32_u24 v62, 7168, v14
    v_lshl_add_u32 v62, v13, 5, v62
    v_lshl_add_u32 v62, v12, 4, v62
    s_mul_i32 s73, s3, {4*7168}
    s_lshl_b32 s29, s6, 7
    s_add_u32 s73, s73, s29
    s_add_u32 s73, s73, {HF}
    s_lshl_b32 s81, s3, 12
    s_add_u32 s72, s81, {HM_L}
    s_add_u32 s81, s81, {HW}""")
    floads()
    def pref():
        fix64(96, 48, after=8); fix64(128, 48, after=4, n=4); unpack2(164, 55); stamp(14)
    spoll([(f"buffer_load_dwordx4 v[{144+4*k}:{147+4*k}], v60, {SW}, s72 offen offset:{512*k} sc1", 144 + 4 * k, mhook(k)) for k in range(4)], 32, pre=pref, guard=False)
    a("L_F:")
    stamp(10)
    spoll([(f"buffer_load_dwordx4 v[{32+4*k}:{35+4*k}], v3, {SW}, s81 offen offset:{1024*k} sc1", 32 + 4 * k, None) for k in range(4)], 48)
    stamp(11)
    add4(32, 32, 36); add4(40, 40, 44); add4(32, 32, 40)
    halve32(32)
    round2(32, 32, 36)
    pkmul(32, 32, 12)
    round2(32, 32, 36)
    pkadd(32, 32, 164)
    round2(22, 32, 36)
    a(f"ds_write_b64 v160, v[22:23] offset:{XG}\nds_write_b64 v160, v[18:19] offset:{XG+8}")
    ln2(22, 32, 36)
    pkmul(32, 32, 16)
    round2(32, 32, 36)
    pkadd(32, 32, 14)
    a("v_cvt_pk_bf16_f32 v55, v32, v33")
    shuffle(55)
    gemv(8, 24, [96], [44])
    a(f"v_cndmask_b32 v44, v44, v46, s[34:35]\nv_cndmask_b32 v45, v45, v47, s[34:35]\nds_write_b64 v63, v[44:45] offset:{RED+12288}")
    barrier_nd()
    for k in range(4): a(f"ds_read_b128 v[{32+4*k}:{35+4*k}], v21 offset:{RED+12288+512*k}")
    a("s_waitcnt lgkmcnt(0)")
    add4(32, 32, 36); add4(40, 40, 44); add4(32, 32, 40)
    a("""v_permlane32_swap_b32 v32, v33
    v_permlane32_swap_b32 v34, v35
    v_add_f32 v32, v32, v33
    v_add_f32 v33, v34, v35""")
    round2(32, 32, 36)
    silu(1, 34, 32, 36)
    a("""v_cvt_pk_bf16_f32 v34, v34, v34
    v_and_b32 v34, s70, v34
    v_mul_f32 v34, v34, v33
    v_cvt_pk_bf16_f32 v34, v34, v34
    ds_write_b16 v53, v34
    ds_read_b128 v[24:27], v54
    s_waitcnt lgkmcnt(0)""")
    gemv(4, 24, [128], [44])
    encode(44)
    a(f"""s_cbranch_execz L_X3
    s_mov_b32 exec_hi, 0
    buffer_store_dwordx4 v[44:47], v62, {SW}, s73 offen sc1
    s_mov_b32 exec_hi, -1""")
    stamp(12)
    a("s_branch L_end")

    a(f"""L_X2:
    s_sub_u32 s5, s5, 24
    s_lshr_b32 s6, s5, 1
    s_lshl_b32 s6, s6, 3
    s_add_u32 s6, s6, s4
    s_lshl_b32 s6, s6, 1
    s_and_b32 s29, s5, 1
    s_add_u32 s6, s6, s29
    s_cmp_ge_u32 s6, 56
    s_cbranch_scc1 L_end
    v_and_b32 v58, 1, v1
    s_mul_i32 s76, s6, 7168
    s_add_u32 s76, s76, {HF}
    s_add_u32 s77, s76, 4096
    s_and_b32 s28, s6, 3
    s_lshl_b32 s28, s28, 3
    v_and_b32 v56, 0x27, v0
    v_add_u32 v56, s28, v56
    s_lshr_b32 s29, s6, 2
    s_lshl_b32 s32, s29, 7
    s_lshl_b32 s29, s29, 10
    v_lshlrev_b32 v59, 4, v56
    v_lshl_add_u32 v59, v58, 2, v59
    v_add_u32 v59, s29, v59
    v_and_b32 v57, 15, v56
    v_lshlrev_b32 v57, 3, v57
    v_bfe_u32 v12, v56, 4, 1
    v_lshl_add_u32 v57, v12, 10, v57
    v_lshrrev_b32 v12, 5, v56
    v_lshl_add_u32 v57, v12, 2, v57
    v_lshl_add_u32 v57, v58, 1, v57""")
    srd(24, P_OUT, 2048)
    if dry: a("s_mov_b64 exec, 0\ns_branch L_F")
    a("L_X3:\ns_cbranch_execz L_X4\ns_cmp_ge_u32 s6, 32\ns_cbranch_scc1 L_end\ns_barrier\ns_barrier\nL_X4:")
    a(f"ds_read_b32 v40, v59 offset:{XG}\nds_read_b32 v42, v59 offset:{XG+8}\ns_waitcnt lgkmcnt(0)")
    spoll([(f"buffer_load_dwordx4 v[{64+4*k}:{67+4*k}], v3, {SW}, {'s76' if k < 4 else 's77'} offen offset:{1024*(k&3)} sc1", 64 + 4 * k, None) for k in range(7)], 32)
    stamp(13)
    for k in range(0, 12, 2): pkadd(64 + k, 64 + k, 80 + k)
    for k in range(0, 8, 2): pkadd(64 + k, 64 + k, 72 + k)
    add4(44, 64, 68)
    halve32(44)
    a(f"""v_permlane16_swap_b32 v44, v45
    v_add_f32 v44, v44, v45
    v_add_f32_dpp v44, v44, v44 row_ror:8 {DPPM}
    v_cvt_pk_bf16_f32 v44, v44, v44
    v_and_b32 v44, s70, v44
    v_mul_f32 v44, v44, v42
    v_cvt_pk_bf16_f32 v44, v44, v44
    v_and_b32 v44, s70, v44
    v_add_f32 v44, v44, v40
    v_cvt_pk_bf16_f32 v44, v44, v44
    s_cbranch_execz L_dry3
    s_mov_b32 exec_lo, 0x00ff00ff
    s_mov_b32 exec_hi, 0x00ff00ff
    buffer_store_short v44, v57, {SD}, s32 offen
    s_mov_b64 exec, -1
    s_cmp_lg_u32 s6, 0
    s_cbranch_scc1 L_end
    v_mov_b32 v36, s68
    v_mov_b32 v37, 0
    s_mov_b64 exec, 1
    buffer_store_dword v36, v37, {SW}, 0 offen
    s_mov_b64 exec, -1
    s_branch L_end
    L_dry3:
    s_mov_b64 exec, -1
    s_branch L_X3""")

    sec('end')
    a("L_end:")
    if dbg:
        a(f"""s_mov_b64 exec, -1
        s_lshr_b32 s28, s2, 3
        s_xor_b32 s28, s28, s2
        s_and_b32 s28, s28, 7
        s_cbranch_scc1 L_exit
        s_and_b32 s28, s46, 6
        s_cmp_eq_u32 s28, 4
        s_cbranch_scc1 L_exit
        s_cmp_eq_u32 s28, 6
        s_cbranch_scc1 L_exit
        s_memrealtime s[84:85]
        s_waitcnt lgkmcnt(0)
        v_writelane_b32 v166, s84, 12
        v_writelane_b32 v166, s86, 1
        s_not_b32 s86, s86
        v_writelane_b32 v166, s86, 0
        v_lshlrev_b32 v37, 2, v0
        s_mov_b64 exec, 0xffff
        global_atomic_umax v37, v166, s[60:61]""")
    elif stamps:
        a(f"""s_mov_b64 exec, -1
        s_memrealtime s[84:85]
        s_waitcnt lgkmcnt(0)
        v_writelane_b32 v166, s84, 8
        v_writelane_b32 v166, s86, 0
        s_lshl_b32 s28, s2, 4
        s_add_u32 s28, s28, s46
        s_lshl_b32 s28, s28, 6
        s_add_u32 s28, s28, {STAMP}
        v_lshlrev_b32 v37, 2, v0
        v_add_u32 v37, s28, v37
        s_mov_b64 exec, 0xffff
        global_store_dword v37, v166, s[62:63]""")
    a("L_exit:\ns_endpgm")

    o = sum([secs[n] for n in ('entry', 'Me', 'W', 'H', 'T', 'F', 'end')], [])
    body = pad(o)
    out = [HEADER.rstrip("\n"),
           "; Fused persistent kernel: 256 workgroups (one per CU), roles by workgroup id, tagged 16-byte hand-offs through d_ws.",
           f"; @launch grid=(256,1,1) block=({NW*64},1,1) lds={LDS_BYTES}",
           '.amdgcn_target "amdgcn-amd-amdhsa--gfx950"', ".text", f".globl {NAME}_kernel", ".p2align 12",
           f".type {NAME}_kernel,@function", f"{NAME}_kernel:"]
    out += [("" if l.endswith(":") else "    ") + l for l in body]
    out += ['.section .rodata,"a"', ".p2align 6", f".amdhsa_kernel {NAME}_kernel",
            "  .amdhsa_next_free_vgpr 168", "  .amdhsa_next_free_sgpr 102", "  .amdhsa_accum_offset 168",
            "  .amdhsa_group_segment_fixed_size 0", "  .amdhsa_kernarg_size 112", "  .amdhsa_user_sgpr_count 2",
            "  .amdhsa_user_sgpr_kernarg_segment_ptr 1", "  .amdhsa_system_sgpr_workgroup_id_x 1",
            "  .amdhsa_float_denorm_mode_32 3", ".end_amdhsa_kernel"]
    return "\n".join(out) + "\n"

if __name__ == "__main__":
    import argparse
    ap = argparse.ArgumentParser()
    ap.add_argument("-o", default="cdna_kernels/" + NAME + ".s")
    ap.add_argument("--stamps", action="store_true")
    ap.add_argument("--kw", default="")
    args = ap.parse_args()
    kw = eval("dict(" + args.kw + ")")
    open(args.o, "w").write(gen(stamps=args.stamps, **kw))
```

```python
import sys
sys.path.insert(0, "gen")
from asmlib import pad

NAME = "adaLN_cond__sliding_block_cached__swiglu_ffn__decode"
HEADER = open("cdna_kernels/" + NAME + ".s.ref").read().split("; Override launch")[0]

HG = 0x38000
HM_E, HQ, HML, HA, HW, HM_L, HF, STAMP = 0x10000, 0x20000, 0x30000, 0x40000, 0xB0000, 0xC0000, 0xD0000, 0x200000
WS_BYTES = 0x400000
NW = 12
MX, LS, FLG, ST = 0, 192, 384, 512
KRDY, QRDY, OST, QGO, FL1, TOK = 48, 52, 56, 60, 64, 384
QL = 1024
SH = 1024
RED = 6144
XG = RED + 16384
KT = RED + 3 * 8192
LDS_BYTES = KT + 11 * 8192
assert KT % 256 == 0
LOG2E = "0x3fb8aa3b"
POLL_MAX = 1 << 16
LOC = 0x100000
DPPM = "row_mask:0xf bank_mask:0xf"

def gen(stamps=False, nt='nt', dry=True, win1=24, t1=3, win2=28, vd=4, vx=4, dual=True, gm=63, qp=(8, 9), pk=0, fwhen=1, pff=True, evs=1, npo=3, pml=True, npq=4, wsplit=4, qgo=True, pqw=False, dbg=False, dryq=False, kcnt=True, qd=3, qsl=8, tlb=False, pfe=False, po10=0, woe=False, pc3=True, wbl=False, osc=''):
    secs = {}
    cur = [None]
    secname = [None]
    DBG = {('Me', 2): 2, ('W', 3): 3, ('W', 4): 4, ('T', 5): 5, ('H', 6): 6, ('W', 6): 7, ('W', 9): 8, ('F', 11): 9, ('F', 12): 10, ('F', 13): 11,
           ('H', 1): 13, ('T', 3): 14, ('F', 10): 15}
    def sec(n):
        secs[n] = []; cur[0] = secs[n]; secname[0] = n
    def a(s):
        for l in s.strip().split("\n"):
            cur[0].append(l.strip())
    uid = [0]
    def lab(p):
        uid[0] += 1
        return f"L_{p}{uid[0]}"
    def stamp(k):
        if dbg:
            k = DBG.get((secname[0], k))
            if k is None: return
        if stamps:
            S = lab("st")
            a(f"s_cbranch_execz {S}\ns_memrealtime s[84:85]\ns_waitcnt lgkmcnt(0)\nv_writelane_b32 v166, s84, {k}\n{S}:")
    def srd(q, ptr, size):
        a(f"s_mov_b32 s{q}, s{ptr}\ns_mov_b32 s{q+1}, s{ptr+1}\ns_mov_b32 s{q+2}, {size:#x}\ns_mov_b32 s{q+3}, 0x00020000")
    P_X, P_K, P_V, P_WQ, P_WO, P_WG, P_WU, P_WD, P_C, P_WM, P_OUT, P_WS = 36, 38, 40, 42, 44, 48, 50, 52, 54, 56, 58, 62
    SA, SB, SW, SC, SD = "s[8:11]", "s[12:15]", "s[16:19]", "s[20:23]", "s[24:27]"
    def pr(r): return f"v[{r}:{r+1}]"
    def pkadd(d, x, y, mod=""): a(f"v_pk_add_f32 {pr(d)}, {pr(x)}, {pr(y)} {mod}")
    def pkmul(d, x, y, mod=""): a(f"v_pk_mul_f32 {pr(d)}, {pr(x)}, {pr(y)} {mod}")
    def add4(d, x, y): pkadd(d, x, y); pkadd(d + 2, x + 2, y + 2)
    def round2(d, s, t):
        a(f"v_cvt_pk_bf16_f32 v{t}, v{s}, v{s+1}\nv_lshlrev_b32 v{d}, 16, v{t}\nv_and_b32 v{d+1}, s70, v{t}")
    def round4(d, s, t):
        a(f"v_cvt_pk_bf16_f32 v{t}, v{s}, v{s+1}\nv_cvt_pk_bf16_f32 v{t+1}, v{s+2}, v{s+3}")
        a(f"v_lshlrev_b32 v{d}, 16, v{t}\nv_and_b32 v{d+1}, s70, v{t}\nv_lshlrev_b32 v{d+2}, 16, v{t+1}\nv_and_b32 v{d+3}, s70, v{t+1}")
    def unpack4(d, s):
        a(f"v_lshlrev_b32 v{d}, 16, v{s}\nv_and_b32 v{d+1}, s70, v{s}\nv_lshlrev_b32 v{d+2}, 16, v{s+1}\nv_and_b32 v{d+3}, s70, v{s+1}")
    def unpack2(d, s):
        a(f"v_lshlrev_b32 v{d}, 16, v{s}\nv_and_b32 v{d+1}, s70, v{s}")
    def tagsetup():
        a("""s_waitcnt lgkmcnt(0)
        s_mul_i32 s68, s83, 1664525
        s_add_u32 s68, s68, 1013904223
        s_and_b32 s64, s68, 0xff
        s_bfe_u32 s65, s68, 0x70009
        s_lshl_b32 s65, s65, 1
        s_andn2_b32 s66, 1, s68
        s_or_b32 s65, s65, s66
        s_bfe_u32 s66, s68, 0x80010
        s_lshr_b32 s67, s68, 24
        v_mov_b32 v8, s64
        v_mov_b32 v9, s65
        v_mov_b32 v10, s66
        v_mov_b32 v11, s67""")
    def decode(regs, t):
        allr = []
        for r in regs:
            for k in range(4):
                a(f"v_xor_b32 v{r+k}, s{64+k}, v{r+k}"); allr.append(r + k)
        a(f"v_or3_b32 v{t}, v{allr[0]}, v{allr[1]}, v{allr[2]}")
        rest = allr[3:]
        while len(rest) >= 2:
            a(f"v_or3_b32 v{t}, v{t}, v{rest[0]}, v{rest[1]}"); rest = rest[2:]
        a(f"v_bitop3_b32 v{t}, v{t}, v{rest[0]}, s69 bitop3:0x54\nv_cmp_ne_u32 vcc, 0, v{t}")
    def poll(loads, regs, t, two=None, pre=None):
        L, D, X = lab("poll"), lab("pdone"), lab("pdec")
        if two: a(f"v_add_u32 v{two[0]}, {LOC if dual else 0}, v{two[1]}")
        a(f"s_mov_b32 s71, {POLL_MAX-1}\ns_cbranch_execz {X}")
        if pre:
            W = lab("pw")
            for l in loads: a(l)
            pre()
            a(f"s_branch {W}")
        a(f"{L}:\ns_cbranch_execz {D}")
        if two and dual: a(f"s_and_b32 s47, s71, {gm}\ns_cselect_b32 s47, {LOC}, 0\nv_add_u32 v{two[0]}, s47, v{two[1]}")
        for l in loads: a(l)
        a(f"s_sub_u32 s71, s71, 1\ns_cbranch_scc1 {D}")
        if pre: a(f"{W}:")
        a(f"s_waitcnt vmcnt(0)\n{X}:")
        decode(regs, t)
        a(f"s_cbranch_vccnz {L}\n{D}:")
    def spoll(items, t, twos=(), pre=None, mid=None, guard=True):
        L, D, X, W = lab("sp"), lab("spd"), lab("spx"), lab("spw")
        for d_, s_ in twos: a(f"v_add_u32 v{d_}, {LOC if dual else 0}, v{s_}")
        a(f"s_mov_b32 s71, {POLL_MAX-1}\ns_mov_b32 s33, {(1 << len(items)) - 1}")
        if guard: a(f"s_cbranch_execz {X}")
        if pre:
            for l, _, _ in items: a(l)
            pre()
            a(f"s_branch {W}")
        a(f"{L}:")
        if guard: a(f"s_cbranch_execz {D}")
        if twos and dual:
            a(f"s_and_b32 s47, s71, {gm}\ns_cselect_b32 s47, {LOC}, 0")
            for d_, s_ in twos: a(f"v_add_u32 v{d_}, s47, v{s_}")
        for j, (l, _, _) in enumerate(items):
            S = lab("sl")
            a(f"s_bitcmp1_b32 s33, {j}\ns_cbranch_scc0 {S}\n{l}\n{S}:")
        a(f"s_sub_u32 s71, s71, 1\ns_cbranch_scc1 {D}\n{W}:\ns_waitcnt vmcnt(0)\n{X}:")
        for j, (_, r, hook) in enumerate(items):
            S = lab("sc")
            a(f"s_bitcmp1_b32 s33, {j}\ns_cbranch_scc0 {S}")
            decode([r], t)
            a(f"s_cbranch_vccnz {S}\ns_bitset0_b32 s33, {j}")
            if hook: hook()
            a(f"{S}:")
        if mid:
            a(f"s_cmp_eq_u32 s33, 0\ns_cbranch_scc1 {D}\ns_cbranch_execz {D}")
            mid()
            a(f"s_branch {L}\n{D}:")
        else:
            a(f"s_cmp_lg_u32 s33, 0\ns_cbranch_scc1 {L}\n{D}:")
    def encode(r, rnd=True):
        for k in range(4):
            if rnd: a(f"v_add_u32 v{r+k}, 0x80, v{r+k}")
        for k in range(4):
            a(f"v_and_or_b32 v{r+k}, v{r+k}, s69, v{8+k}")
    def fold(kind, r, t, n=4, op="v_add_f32"):
        for k in range(n): a(f"v_mov_b32 v{t+k}, v{r+k}")
        for k in range(n): a(f"v_permlane{kind}_swap_b32 v{r+k}, v{t+k}")
        if n == 4 and op == "v_add_f32": add4(r, r, t)
        else:
            for k in range(n): a(f"{op} v{r+k}, v{r+k}, v{t+k}")
    def halve32(r):
        a(f"v_permlane32_swap_b32 v{r}, v{r+2}\nv_permlane32_swap_b32 v{r+1}, v{r+3}")
        pkadd(r, r, r + 2)
    def selsetup():
        a("""v_and_b32 v12, 1, v2
        v_cmp_eq_u32 vcc, 1, v12
        v_mov_b32 v13, 0x0c0c0100
        v_mov_b32 v14, 0x01000c0c
        v_cndmask_b32 v13, v13, v14, vcc
        v_mov_b32 v14, 0x0c0c0302
        v_mov_b32 v15, 0x03020c0c
        v_cndmask_b32 v14, v14, v15, vcc
        v_and_b32 v12, 2, v2
        v_cmp_eq_u32 vcc, 2, v12
        v_mov_b32 v15, 0x0c0c0c0c
        v_cndmask_b32 v4, v13, v15, vcc
        v_cndmask_b32 v5, v15, v13, vcc
        v_cndmask_b32 v6, v14, v15, vcc
        v_cndmask_b32 v7, v15, v14, vcc""")
    def gemv(np_, P, Ws, Ds, AB=32, stride=4, waits=None, first=True):
        def build(m):
            b = AB + 4 * (m % 3)
            for k in range(4): a(f"v_perm_b32 v{b+k}, v{P+m}, v{P+m}, v{4+k}")
        build(0)
        for m in range(np_):
            if m + 1 < np_: build(m + 1)
            b = AB + 4 * (m % 3)
            if waits: a(f"s_waitcnt vmcnt({waits[m]})")
            for W, D in zip(Ws, Ds):
                c = "0" if (m == 0 and first) else f"v[{D}:{D+3}]"
                a(f"v_mfma_f32_16x16x32_bf16 v[{D}:{D+3}], v[{b}:{b+3}], v[{W+stride*m}:{W+stride*m+3}], {c}")
    def silu(n, d, s, t):
        for k in range(n): a(f"v_mul_f32 v{t+k}, 0xbfb8aa3b, v{s+k}")
        for k in range(n): a(f"v_exp_f32 v{t+k}, v{t+k}")
        for k in range(n): a(f"v_add_f32 v{t+k}, 1.0, v{t+k}")
        for k in range(n): a(f"v_rcp_f32 v{t+k}, v{t+k}")
        for k in range(n): a(f"v_mul_f32 v{d+k}, v{s+k}, v{t+k}")
    def barrier_nd():
        S = lab("nb")
        a(f"s_waitcnt lgkmcnt(0)\ns_cbranch_execz {S}\ns_barrier\n{S}:")
    def shuffle(src, wa=58):
        a(f"ds_write_b32 v{wa}, v{src}\nds_read_b128 v[24:27], v59\nds_read_b128 v[28:31], v59 offset:16\ns_waitcnt lgkmcnt(0)")
    def shufsetup():
        a(f"""s_lshl_b32 s28, s3, 9
        s_add_u32 s28, s28, {SH}
        v_and_b32 v58, 31, v0
        v_lshlrev_b32 v58, 3, v58
        v_lshrrev_b32 v59, 5, v0
        v_lshl_add_u32 v58, v59, 2, v58
        v_add_u32 v56, {ST}, v58
        v_and_b32 v56, -8, v56
        v_add_u32 v58, s28, v58
        v_and_b32 v57, 1, v1
        v_lshlrev_b32 v57, 7, v57
        v_lshl_add_u32 v57, v59, 3, v57
        s_lshl_b32 s29, s3, 4
        s_add_u32 s29, s29, {ST}
        v_add_u32 v57, s29, v57
        v_bfe_u32 v59, v2, 2, 1
        v_lshlrev_b32 v59, 7, v59
        v_lshl_add_u32 v59, v1, 5, v59
        v_add_u32 v59, s28, v59""")
    NEGB = "op_sel_hi:[1,0] neg_lo:[0,1] neg_hi:[0,1]"
    def ln2(x, n, t, drysafe=True):
        a(f"v_mov_b32_dpp v{t}, v{x} row_newbcast:0 {DPPM}")
        pkadd(t + 2, x, t, NEGB)
        a(f"v_add_f32 v{t+4}, v{t+2}, v{t+3}\nv_mul_f32 v{t+5}, v{t+2}, v{t+2}\nv_fmac_f32 v{t+5}, v{t+3}, v{t+3}")
        for k in (8, 4, 2, 1):
            a(f"v_add_f32_dpp v{t+4}, v{t+4}, v{t+4} row_ror:{k} {DPPM}\nv_add_f32_dpp v{t+5}, v{t+5}, v{t+5} row_ror:{k} {DPPM}")
        a(f"""v_fmamk_f32 v{t}, v{t+4}, 0x3d000000, v{t}
        v_mul_f32 v{t+4}, v{t+4}, v{t+4}
        v_fmamk_f32 v{t+1}, v{t+4}, 0xbd000000, v{t+5}
        ds_write_b64 v57, {pr(t)}""")
        barrier_nd() if drysafe else a("s_waitcnt lgkmcnt(0)\ns_barrier")
        a(f"""ds_read_b64 {pr(t)}, v56
        s_waitcnt lgkmcnt(0)
        v_mov_b32_dpp v{t+2}, v{t} row_newbcast:0 {DPPM}
        v_sub_f32 v{t+4}, v{t}, v{t+2}
        v_mul_f32 v{t+3}, v{t+4}, v{t+4}
        v_fmamk_f32 v{t+5}, v{t+3}, 0x42000000, v{t+1}""")
        for k in (8, 4, 2, 1):
            a(f"v_add_f32_dpp v{t+4}, v{t+4}, v{t+4} row_ror:{k} {DPPM}\nv_add_f32_dpp v{t+5}, v{t+5}, v{t+5} row_ror:{k} {DPPM}")
        a(f"""v_fmamk_f32 v{t}, v{t+4}, 0x3d800000, v{t+2}
        v_mul_f32 v{t+4}, v{t+4}, v{t+4}
        v_fmamk_f32 v{t+1}, v{t+4}, 0xc0000000, v{t+5}
        v_mul_f32 v{t+1}, 0x3b000000, v{t+1}
        v_max_f32 v{t+1}, 0, v{t+1}""")
        ln_tail(x, n, t)
    def ln_tail(x, n, t):
        round2(t, t, t + 2)
        a(f"v_add_f32 v{t+2}, 0x3727c5ac, v{t+1}")
        pkadd(n, x, t, NEGB)
        a(f"v_cvt_pk_bf16_f32 v{t+2}, v{t+2}, v{t+2}\nv_cvt_pk_bf16_f32 v{t+3}, v{n}, v{n+1}\nv_and_b32 v{t+2}, s70, v{t+2}\nv_sqrt_f32 v{t+2}, v{t+2}")
        unpack2(n, t + 3)
        a(f"v_cvt_pk_bf16_f32 v{t+2}, v{t+2}, v{t+2}\nv_and_b32 v{t+2}, s70, v{t+2}\nv_rcp_f32 v{t+2}, v{t+2}")
        pkmul(n, n, t + 2, "op_sel_hi:[1,0]")
        round2(n, n, t + 3)
    def ln_full(raw, u, x, n, t):
        for k in range(8): unpack2(u + 2 * k, raw + k)
        def red(src, d):
            for st in (8, 4, 2):
                for k in range(0, st, 2): pkadd(raw + k, src + k, src + st + k)
                src = raw
            a(f"v_add_f32 v{d}, v{raw}, v{raw+1}")
            for k in (8, 4, 2, 1): a(f"v_add_f32_dpp v{d}, v{d}, v{d} row_ror:{k} {DPPM}")
            fold(32, d, t + 4, 1)
            a(f"v_mul_f32 v{d}, 0x3b000000, v{d}")
        red(u, t)
        for k in range(8): pkadd(u + 2 * k, u + 2 * k, t, NEGB)
        for k in range(8): pkmul(u + 2 * k, u + 2 * k, u + 2 * k)
        red(u, t + 1)
        ln_tail(x, n, t)
    def wloads(reg, n, vo, srdq, sbase, steps, w=4):
        for m in range(n):
            a(f"s_add_u32 s29, {sbase}, {steps[m]}")
            a(f"buffer_load_dwordx{w} v[{reg+w*m}:{reg+w*m+w-1}], {vo}, {srdq}, s29 offen {nt}")
    def fix64(base, t, after=None, n=8):
        for m in range(n):
            if after is not None: a(f"s_waitcnt vmcnt({after + n - 1 - m})")
            r = base + 4 * m
            a(f"v_mov_b32 v{t}, v{r}\nv_mov_b32 v{t+1}, v{r+1}")
            a(f"v_mov_b32_dpp v{r}, v{r+2} row_ror:8 row_mask:0xf bank_mask:0xc\nv_mov_b32_dpp v{r+1}, v{r+3} row_ror:8 row_mask:0xf bank_mask:0xc")
            a(f"v_mov_b32_dpp v{r+2}, v{t} row_ror:8 row_mask:0xf bank_mask:0x3\nv_mov_b32_dpp v{r+3}, v{t+1} row_ror:8 row_mask:0xf bank_mask:0x3")
    def fix128(base):
        for m in range(8):
            r = base + 8 * m
            a(f"v_swap_b32 v{r+2}, v{r+4}\nv_swap_b32 v{r+3}, v{r+5}")
    def vo64(dst, rowbytes, t):
        a(f"""v_lshrrev_b32 v{t}, 3, v2
        v_lshl_add_u32 v{t}, v1, 4, v{t}
        v_mul_u32_u24 v{t}, {rowbytes}, v{t}
        v_and_b32 v{dst}, 7, v2
        v_lshl_add_u32 v{dst}, v{dst}, 4, v{t}""")

    sec('entry')
    a(f"""s_cmp_ge_u32 s2, 256
    s_cbranch_scc1 L_exit
    s_load_dwordx16 s[36:51], s[0:1], 0
    s_load_dwordx8 s[52:59], s[0:1], 64
    s_load_dwordx4 s[60:63], s[0:1], 96""")
    if stamps:
        a("s_memrealtime s[86:87]\nv_mov_b32 v166, 0")
    a(f"""v_lshrrev_b32 v1, 6, v0
    v_and_b32 v0, 63, v0
    v_readfirstlane_b32 s3, v1
    v_lshrrev_b32 v1, 4, v0
    v_and_b32 v2, 15, v0
    v_lshlrev_b32 v3, 4, v0
    s_and_b32 s4, s2, 7
    s_lshr_b32 s5, s2, 3
    s_mov_b32 s69, 0xffffff00
    s_mov_b32 s70, 0xffff0000
    s_cmp_lg_u32 s3, 2
    s_cbranch_scc1 L_nopf
    s_getpc_b64 s[28:29]
    L_pc:
    s_min_u32 s30, s5, (L_exit-L_pc)/1024-1
    s_lshl_b32 s30, s30, 10
    s_add_u32 s30, s30, (L_exit-L_pc)&0x3f0
    v_add_u32 v12, s30, v3
    global_load_dwordx4 v[160:163], v12, s[28:29]
    L_nopf:
    s_cmp_lt_u32 s5, 8
    s_cbranch_scc1 L_W
    s_and_b32 s6, s5, 1
    s_sub_u32 s7, s5, 8
    s_lshr_b32 s7, s7, 1
    s_mul_i32 s28, s7, 10
    s_min_u32 s29, s7, 8
    s_add_u32 s28, s28, s29
    s_lshl_b32 s28, s28, 13
    s_lshl_b32 s29, s6, 3
    s_add_u32 s29, s29, s4
    s_lshl_b32 s29, s29, 23
    s_add_u32 s28, s28, s29
    s_add_u32 s28, s28, 0x700000
    s_cmp_lt_u32 s7, 8
    s_cselect_b32 s35, 11, 10
    s_cmp_gt_u32 s3, 1
    s_cbranch_scc1 L_T
    s_cmp_eq_u32 s3, 1
    s_cbranch_scc1 L_X
    v_lshlrev_b32 v12, 2, v1
    v_xor_b32 v12, v12, v2
    v_lshlrev_b32 v12, 4, v12
    v_lshl_add_u32 v4, v1, 8, v12
    v_xor_b32 v5, 16, v4
    v_xor_b32 v6, 32, v4
    v_xor_b32 v7, 48, v4
    s_mov_b32 s31, {KT}
    s_mov_b32 s32, 3
    s_mov_b32 s30, {2*t1-3}
    s_lshl_b32 s33, s35, 1
    s_sub_u32 s33, s33, {2*t1}
    s_setprio 3
    s_waitcnt lgkmcnt(0)
    s_load_dword s83, s[62:63], 0""")
    if stamps: a("s_mov_b32 s46, s3")
    srd(8, P_K, 0x8000000)
    srd(12, P_WQ, 512 * 8192)
    if woe and pc3:
        a("s_cmp_eq_u32 s35, 11\ns_cbranch_scc1 L_pq")
        srd(20, P_WO, 4096 * 1024)
        a(f"""s_sub_u32 s29, s5, 24
        s_lshl_b32 s29, s29, 16
        s_lshl_b32 s34, s4, 19
        s_add_u32 s29, s29, s34
        v_lshlrev_b32 v12, 10, v0
        buffer_load_dword v161, v12, {SC}, s29 offen offset:384
        s_branch L_k0
        L_pq:""")
    a(f"""s_cmp_eq_u32 s35, 10
    s_cbranch_scc1 L_k0
    s_sub_u32 s29, s5, 8
    s_lshl_b32 s29, s29, 18
    s_lshl_b32 s34, s4, 10
    s_add_u32 s29, s29, s34
    v_lshrrev_b32 v12, 3, v0
    v_and_b32 v13, 7, v0
    v_lshlrev_b32 v13, 7, v13
    v_lshl_add_u32 v12, v12, 13, v13""")
    for k in range(npq):
        a(f"buffer_load_dword v161, v12, {SB}, s29 offen\ns_add_u32 s29, s29, 65536")
    if pqw:
        stamp(5)
        a("s_waitcnt vmcnt(0)")
        stamp(2)
    for nm, cnt, win in (("L_k0", "s32", 63), ("L_k1", "s30", win1), ("L_k2", "s33", win2)):
        a(f"{nm}:\ns_mov_b32 m0, s31\ns_add_u32 s31, s31, 4096")
        for j in range(4):
            a(f"buffer_load_dwordx4 v{4+j}, {SA}, s28 offen offset:{j*1024} {nt} lds")
            if win < 63 and j & 1: a(f"s_waitcnt vmcnt({win-2})")
        if nm == "L_k2" and kcnt: a(f"v_add_u32 v31, 1, v31\nds_write_b32 v30, v31 offset:{KRDY}")
        a(f"s_add_u32 s28, s28, 4096\ns_sub_u32 {cnt}, {cnt}, 1\ns_cmp_lg_u32 {cnt}, 0\ns_cbranch_scc1 {nm}")
        if nm == "L_k0": a("s_barrier")
        if nm == "L_k1":
            a(f"v_mov_b32 v30, {FLG}\nds_write_b32 v30, v30 offset:{QGO}\nv_mov_b32 v31, {2*t1 - (win2 + 1) // 4}")
            assert win2 < 63 and 2 * t1 >= (win2 + 1) // 4
            srd(12, P_WO, 4096 * 1024); srd(20, P_WM, 512 * 6144)
            a(f"""s_sub_u32 s32, s5, 8
            s_mul_i32 s29, s32, {22*1024}
            s_min_u32 s29, s29, {(512-24)*1024}
            s_lshl_b32 s30, s4, 19
            s_add_u32 s29, s29, s30
            v_lshlrev_b32 v27, 7, v0""")
            if po10:
                a(f"s_cmp_eq_u32 s35, 11\ns_cbranch_scc1 L_np10\ns_sub_u32 s29, s5, 24\ns_lshl_b32 s29, s29, 16\ns_add_u32 s29, s29, s30")
                for k in range(po10): a(f"s_waitcnt vmcnt({max(min(k, 2), max(0, min(win1, 32) - 8*(k+1)) + k if k < 3 else 2)})\nbuffer_load_dword v161, v27, {SB}, s29 offen\ns_add_u32 s29, s29, 8192")
                a("L_np10:")
            for k in range(npo): a(f"s_waitcnt vmcnt({max(0, min(win1, 32) - 8*(k+1)) + k})\nbuffer_load_dword v161, v27, {SB}, s29 offen\ns_add_u32 s29, s29, 8192")
            if pml: a(f"""s_mul_i32 s29, s32, 22
            s_min_u32 s29, s29, {512-22}
            s_mul_i32 s29, s29, 6144
            s_lshl_b32 s30, s4, 9
            s_add_u32 s29, s29, s30
            s_add_u32 s29, s29, 2048
            v_lshrrev_b32 v27, 2, v0
            v_min_u32 v12, 5, v27
            v_mul_u32_u24 v27, 6144, v27
            v_mul_u32_u24 v12, 6144, v12
            v_and_b32 v13, 3, v0
            v_lshl_add_u32 v27, v13, 7, v27
            v_lshl_add_u32 v12, v13, 7, v12
            s_add_u32 s30, s29, {16*6144}
            buffer_load_dword v161, v27, {SC}, s29 offen
            buffer_load_dword v161, v12, {SC}, s30 offen""")
    if pfe:
        a(f"""s_cmp_eq_u32 s4, 7
        s_cbranch_scc1 L_npf
        s_sub_u32 s28, s5, 8
        s_and_b32 s29, s28, 7
        s_cmp_ge_u32 s28, 16
        s_cbranch_scc1 L_pfd
        s_cmp_lt_u32 s28, 8
        s_cselect_b32 s20, s{P_WG}, s{P_WU}
        s_cselect_b32 s21, s{P_WG+1}, s{P_WU+1}
        s_mov_b32 s22, {512*3584}
        v_and_b32 v14, 3, v0
        v_lshrrev_b32 v13, 2, v0
        v_mul_u32_u24 v13, 3584, v13
        v_lshl_add_u32 v13, v14, 7, v13
        s_mul_i32 s30, s29, {64*3584}
        s_lshl_b32 s31, s4, 9
        s_add_u32 s30, s30, s31
        s_mov_b32 s31, {16*3584}
        s_branch L_pfg
        L_pfd:
        s_mov_b32 s20, s{P_WD}
        s_mov_b32 s21, s{P_WD+1}
        s_mov_b32 s22, {1792*1024}
        v_lshlrev_b32 v13, 7, v0
        s_lshl_b32 s30, s4, 3
        s_add_u32 s30, s30, s29
        s_lshl_b32 s30, s30, 15
        s_mov_b32 s31, 8192
        L_pfg:""")
        for k in range(4): a(f"s_waitcnt vmcnt({max(0, win2 - 8*(k+1)) + k})\nbuffer_load_dword v161, v13, {SC}, s30 offen\ns_add_u32 s30, s30, s31")
        a(f"s_waitcnt vmcnt(4)\nds_write_b32 v30, v30 offset:{KRDY}\ns_waitcnt vmcnt(3)\nL_npf:")
    a(f"v_mov_b32 v30, {FLG}")
    for d in range(vd):
        if d and vx < 8: a(f"s_waitcnt vmcnt({max(0, min(win2, 32) - 8*d)})")
        a(f"ds_write_b32 v30, v30 offset:{TOK+4*d}")
    a("s_branch L_H0")
    sec('H')
    a("L_H0:")
    srd(16, P_WS, WS_BYTES)
    tagsetup()
    a(f"""s_mov_b32 s34, 0x07060302
    v_and_b32 v12, 3, v2
    v_lshrrev_b32 v13, 2, v2
    v_lshlrev_b32 v14, 3, v0
    v_mul_u32_u24 v25, 48, v13
    v_lshl_add_u32 v27, v1, 2, v12
    v_lshl_add_u32 v27, v13, 5, v27
    v_lshlrev_b32 v27, 4, v27
    v_lshlrev_b32 v28, 4, v13
    v_min_u32 v26, 10, v0
    v_lshlrev_b32 v26, 2, v26
    v_add_u32 v29, {KT}, v3
    v_add_u32 v31, {KT+7*8192}, v3
    v_mov_b32 v22, {LOG2E}
    s_mul_i32 s72, s4, 24
    s_mul_i32 s73, s6, 12
    s_add_u32 s72, s72, s73
    s_add_u32 s72, s72, s7
    s_lshl_b32 s73, s72, 11
    s_add_u32 s73, s73, {HA}
    s_lshl_b32 s72, s72, 7
    s_add_u32 s72, s72, {HML}
    s_add_u32 s74, s72, {LOC}
    s_add_u32 s75, s73, {LOC}
    s_sub_u32 s28, s5, 8
    v_and_b32 v101, 3, v0
    v_lshrrev_b32 v100, 2, v0
    v_mul_u32_u24 v100, 3584, v100
    v_lshl_add_u32 v100, v101, 7, v100
    s_mul_i32 s76, s28, {32*3584}
    s_lshl_b32 s31, s4, 9
    s_add_u32 s76, s76, s31
    s_add_u32 s77, s76, {16*3584}
    v_lshlrev_b32 v101, 7, v0
    s_lshl_b32 s78, s4, 4
    s_add_u32 s78, s78, s28
    s_lshl_b32 s78, s78, 14
    s_add_u32 s79, s78, 8192""")
    srd(8, P_WG, 512 * 3584); srd(12, P_WU, 512 * 3584); srd(20, P_WD, 1792 * 1024)
    if kcnt and not pfe:
        a("s_lshl_b32 s29, s35, 1")
        for rem in (24, 16, 8):
            a(f"s_sub_u32 s30, s29, {rem//4}\nv_mov_b32 v102, s30\ns_waitcnt vmcnt({rem})\nds_write_b32 v30, v102 offset:{KRDY}")
    a(f"s_waitcnt vmcnt(0)\nds_write_b32 v30, v30 offset:{KRDY}")
    stamp(1)
    a("L_H:")
    a(f"""L_f1:
    ds_read_b32 v16, v26 offset:{FLG+FL1}""")
    for k in range(3): a(f"ds_read_b128 v[{32+4*k}:{35+4*k}], v25 offset:{MX+16*k}")
    for k in range(3): a(f"ds_read_b128 v[{88+4*k}:{91+4*k}], v25 offset:{LS+16*k}")
    a("""s_waitcnt lgkmcnt(0)
    v_cmp_eq_u32 vcc, 0, v16
    s_cbranch_vccz L_f1d
    s_sleep 1
    s_branch L_f1
    L_f1d:""")
    stamp(3)
    a("""v_max3_f32 v16, v32, v33, v34
    v_max3_f32 v17, v35, v36, v37
    v_max3_f32 v18, v38, v39, v40
    v_max3_f32 v16, v16, v41, v42
    v_max3_f32 v16, v16, v17, v18""")
    for k in range(6): pkadd(32 + 2 * k, 32 + 2 * k, 16, NEGB)
    for k in range(6): pkmul(32 + 2 * k, 32 + 2 * k, 22, "op_sel_hi:[1,0]")
    for k in range(11): a(f"v_exp_f32 v{32+k}, v{32+k}")
    pkmul(18, 32, 88)
    for k in range(1, 5): a(f"v_pk_fma_f32 v[18:19], {pr(32+2*k)}, {pr(88+2*k)}, v[18:19]")
    a("""v_add_f32 v17, v18, v19
    v_fmac_f32 v17, v42, v98
    v_mov_b32 v18, 0
    v_mov_b32 v19, 0""")
    encode(16)
    a(f"""s_cbranch_execz L_col
    s_mov_b64 exec, 0x1111""")
    if dual: a(f"buffer_store_dwordx4 v[16:19], v28, {SW}, s74 offen")
    a(f"""buffer_store_dwordx4 v[16:19], v28, {SW}, s72 offen sc1
    s_mov_b64 exec, -1""")
    stamp(4)
    a("L_col:")
    if stamps: a("s_waitcnt lgkmcnt(0)")
    def colrd(t):
        r = 64 + 12 * (t & 1)
        base, off = ("v29", t * 8192) if t < 7 else ("v31", (t - 7) * 8192)
        a(f"ds_read_b32 v{r+8}, v30 offset:{4*t}\nds_read_b128 v[{r}:{r+3}], {base} offset:{off}\nds_read_b128 v[{r+4}:{r+7}], {base} offset:{off+1024}")
    colrd(0)
    for t in range(11):
        r = 64 + 12 * (t & 1)
        if t < 10:
            colrd(t + 1); a("s_waitcnt lgkmcnt(3)")
        else:
            a("s_waitcnt lgkmcnt(0)")
        a(f"L_cchk{t}:\nv_cmp_eq_u32 vcc, 0, v{r+8}\ns_cbranch_vccz L_cadd{t}")
        colrd(t)
        a(f"s_waitcnt lgkmcnt(0)\ns_branch L_cchk{t}\nL_cadd{t}:")
        for k in range(4):
            sc = pr(32 + (t & ~1))
            if t == 0: a(f"v_pk_mul_f32 {pr(48+2*k)}, {pr(r+2*k)}, {sc} op_sel_hi:[1,0]")
            else: a(f"v_pk_fma_f32 {pr(48+2*k)}, {pr(r+2*k)}, {sc}, {pr(48+2*k)} " + ("op_sel:[0,1,0] op_sel_hi:[1,1,1]" if t & 1 else "op_sel_hi:[1,0,1]"))
    encode(48); encode(52)
    a("s_cbranch_execz L_dryH")
    if dual: a(f"buffer_store_dwordx4 v[48:51], v27, {SW}, s75 offen\nbuffer_store_dwordx4 v[52:55], v27, {SW}, s75 offen offset:256")
    a(f"""buffer_store_dwordx4 v[48:51], v27, {SW}, s73 offen sc1
    buffer_store_dwordx4 v[52:55], v27, {SW}, s73 offen offset:256 sc1
    ds_write_b32 v30, v30 offset:{OST}
    s_waitcnt lgkmcnt(0)""")
    stamp(6)
    if pff:
        a("s_cmp_eq_u32 s35, 10\ns_cbranch_scc1 L_end\ns_cmp_eq_u32 s4, 7\ns_cbranch_scc1 L_end")
        for q, o in ((SA, "s76"), (SB, "s76"), (SA, "s77"), (SB, "s77")): a(f"buffer_load_dword v161, v100, {q}, {o} offen")
        a(f"buffer_load_dword v161, v101, {SC}, s78 offen\nbuffer_load_dword v161, v101, {SC}, s79 offen")
    a("s_branch L_end\nL_dryH:\ns_mov_b64 exec, -1\ns_branch L_att")

    def spin(off, areg, t, sl=1):
        L, D = lab("sp"), lab("spd")
        a(f"""{L}:
        ds_read_b32 v{t}, v{areg} offset:{off}
        s_waitcnt lgkmcnt(0)
        v_cmp_eq_u32 vcc, 0, v{t}
        s_cbranch_vccz {D}
        s_sleep {sl}
        s_branch {L}
        {D}:""")
    sec('T')
    a(f"""L_T:
    s_sub_u32 s3, s3, 2
    v_lshrrev_b32 v13, 2, v2
    v_mul_u32_u24 v25, 48, v13
    s_lshl_b32 s29, s3, 2
    v_add_u32 v26, s29, v25
    v_mov_b32 v30, s29
    v_mov_b32 v16, 0
    v_mov_b32 v17, 0
    v_mov_b32 v18, 0
    v_mov_b32 v19, 0
    v_mov_b32 v28, {FLG}
    ds_write_b32 v30, v16 offset:{FLG}
    ds_write_b32 v30, v16 offset:{FLG+FL1}
    ds_write_b32 v30, v16 offset:{FLG+TOK}
    ds_write_b32 v30, v16 offset:{FLG+TOK+4}
    ds_write_b128 v28, v[16:19] offset:{KRDY}
    s_lshl_b32 s31, s3, 13
    s_add_u32 s28, s28, s31
    s_add_u32 s30, s28, 4096
    s_add_u32 s31, s31, {KT}
    s_mov_b32 s74, 0x11111111
    s_mov_b32 s75, 0x11111111
    s_mov_b32 s76, 0x22222222
    s_mov_b32 s77, 0x22222222
    s_mov_b32 s78, 0x44444444
    s_mov_b32 s79, 0x44444444
    s_mov_b32 s80, 0x88888888
    s_mov_b32 s81, 0x88888888
    s_mov_b32 s33, 0x05040100
    s_mov_b32 s34, 0x07060302
    v_and_b32 v12, 3, v2
    v_lshl_add_u32 v14, v12, 2, v13
    v_lshlrev_b32 v14, 8, v14
    v_xor_b32 v15, v1, v2
    v_lshl_add_u32 v14, v15, 4, v14
    v_add_u32 v4, s31, v14
    v_xor_b32 v5, 64, v4
    v_xor_b32 v6, 0x80, v4
    v_xor_b32 v7, 0xc0, v4
    v_lshlrev_b32 v15, 8, v13
    v_lshl_add_u32 v15, v1, 4, v15
    v_add_u32 v29, s31, v3
    v_mov_b32 v31, 1
    v_mov_b32 v20, 0x3db504f3
    v_mov_b32 v22, {LOG2E}
    s_waitcnt lgkmcnt(0)
    s_barrier""")
    if stamps: a("s_add_u32 s46, s3, 1")
    srd(12, P_V, 0x8000000)
    a("s_load_dword s83, s[62:63], 0")
    srd(16, P_WS, WS_BYTES)
    if tlb:
        a(f"""s_cmp_lg_u32 s3, 1
        s_cbranch_scc1 L_ntl
        buffer_load_dword v161, v16, {SB}, s28 offen {nt}
        buffer_load_dword v161, v16, {SW}, 0 offen sc1""")
        for ptr, size in ((P_WO, 4096 * 1024), (P_WM, 512 * 6144), (P_WG, 512 * 3584), (P_WU, 512 * 3584), (P_WD, 1792 * 1024)):
            srd(20, ptr, size)
            a(f"v_lshlrev_b32 v17, 16, v0\nv_and_b32 v17, 0x300000, v17\nbuffer_load_dword v161, v17, {SC}, 0 offen {nt}")
        a("L_ntl:")
    a(f"""s_lshl_b32 s32, s4, 1
    s_add_u32 s32, s32, s6
    s_lshl_b32 s32, s32, 11
    s_add_u32 s32, s32, {HQ}
    v_lshlrev_b32 v14, 3, v0""")
    tagsetup()
    a(f"s_cmp_lt_u32 s3, {qp[0]}\ns_cbranch_scc1 L_nq\ns_cmp_gt_u32 s3, {qp[1]}\ns_cbranch_scc1 L_nq")
    if qgo: spin(QGO, 28, 16, 2)
    sets = [64 + 8 * k for k in range(qd)]
    def qissue(r):
        if dual: a(f"s_and_b32 s47, s71, {gm}\ns_cselect_b32 s47, {LOC}, 0\nv_add_u32 v27, s47, v3")
        a(f"buffer_load_dwordx4 v[{r}:{r+3}], v27, {SW}, s32 offen sc1\nbuffer_load_dwordx4 v[{r+4}:{r+7}], v27, {SW}, s32 offen offset:1024 sc1")
    a(f"s_mov_b32 s71, {POLL_MAX-1}\nv_mov_b32 v27, v3")
    for k in range(qd - 1):
        qissue(sets[k]); a(f"s_sleep {qsl}")
    a("L_qp:")
    for k in range(qd):
        qissue(sets[(k - 1) % qd])
        a(f"s_waitcnt vmcnt({2*(qd-1)})")
        decode([sets[k], sets[k] + 4], 16)
        r = sets[k]
        a(f"""v_perm_b32 v144, v{r+1}, v{r}, s34
        v_perm_b32 v145, v{r+3}, v{r+2}, s34
        v_perm_b32 v146, v{r+5}, v{r+4}, s34
        v_perm_b32 v147, v{r+7}, v{r+6}, s34
        s_cbranch_vccz L_qd
        s_sub_u32 s71, s71, 1
        s_cbranch_scc1 L_qd""")
    a("s_branch L_qp\nL_qd:")
    stamp(7)
    a(f"""ds_write_b64 v14, v[144:145] offset:{QL}
    ds_write_b64 v14, v[146:147] offset:{QL+512}
    ds_write_b32 v28, v28 offset:{QRDY}""")
    a("L_nq:")
    if dry: a("s_cmp_lg_u32 s3, 4\ns_cbranch_scc1 L_nd4\ns_mov_b64 exec, 0\ns_branch L_H\nL_nd4:\ns_cmp_lg_u32 s3, 5\ns_cbranch_scc1 L_att\ns_mov_b64 exec, 0")
    a(f"""L_att:
    s_lshl_b32 s73, s3, 1
    s_add_u32 s73, s73, 2
    s_mov_b32 s72, 0
    s_cbranch_execz L_k
    s_setprio 2
    L_ev:
    ds_read_b32 v16, v30 offset:{FLG+TOK}
    ds_read_b64 v[18:19], v28 offset:{KRDY}
    s_waitcnt lgkmcnt(0)
    s_bitcmp1_b32 s72, 0
    s_cbranch_scc1 L_ev1
    v_cmp_ne_u32 vcc, 0, v16
    s_cbranch_vccnz L_v
    L_ev1:
    s_bitcmp1_b32 s72, 1
    s_cbranch_scc1 L_ev2
    v_cmp_le_u32 vcc, s73, v18
    s_cbranch_vccnz L_k
    s_branch L_ev3
    L_ev2:
    s_bitcmp1_b32 s72, 2
    s_cbranch_scc1 L_ev3
    v_cmp_ne_u32 vcc, 0, v19
    s_cbranch_vccnz L_sc
    L_ev3:
    s_sleep {evs}
    s_branch L_ev
    L_v:""")
    for j in range(8):
        a(f"buffer_load_dwordx4 v[{32+4*j}:{35+4*j}], v3, {SB}, {'s28' if j < 4 else 's30'} offen offset:{(j&3)*1024} {nt}")
    stamp(1)
    a(f"""s_add_u32 s29, s3, {vd}
    s_cmp_ge_u32 s29, s35
    s_cbranch_scc1 L_v2
    s_waitcnt vmcnt({vx})
    ds_write_b32 v30, v31 offset:{FLG+TOK+4*vd}
    L_v2:
    s_bitcmp1_b32 s72, 2
    s_cbranch_scc1 L_pv
    s_bitset1_b32 s72, 0
    s_setprio 0
    s_branch L_ev
    L_k:""")
    for i in range(4):
        for t in range(2):
            a(f"ds_read_b128 v[{96+16*t+4*i}:{99+16*t+4*i}], v{4+i} offset:{t*4096}")
    stamp(2)
    a("s_bitset1_b32 s72, 1\ns_cbranch_execnz L_ev\nL_sc:")
    stamp(3)
    for i in range(4):
        a(f"ds_read_b128 v[{128+4*i}:{131+4*i}], v15 offset:{QL+64*i}")
    for i in range(4):
        a(f"s_waitcnt lgkmcnt({0 if stamps else 3-i})")
        for t in range(2):
            c = "0" if i == 0 else f"v[{152+4*t}:{155+4*t}]"
            a(f"v_mfma_f32_16x16x32_bf16 v[{152+4*t}:{155+4*t}], v[{96+16*t+4*i}:{99+16*t+4*i}], v[{128+4*i}:{131+4*i}], {c}")
    round4(152, 152, 16); round4(156, 156, 18)
    for k in range(4): pkmul(152 + 2 * k, 152 + 2 * k, 20, "op_sel_hi:[1,0]")
    round4(152, 152, 16); round4(156, 156, 18)
    a("""v_max3_f32 v16, v152, v153, v154
    v_max3_f32 v17, v155, v156, v157
    v_max3_f32 v16, v16, v158, v159
    v_max_f32 v16, v16, v17""")
    fold(16, 16, 17, 1, "v_max_f32"); fold(32, 16, 17, 1, "v_max_f32")
    a(f"ds_write_b32 v26, v16 offset:{MX}")
    for k in range(4): pkadd(152 + 2 * k, 152 + 2 * k, 16, NEGB)
    for k in range(4): pkmul(152 + 2 * k, 152 + 2 * k, 22, "op_sel_hi:[1,0]")
    for k in range(8): a(f"v_exp_f32 v{152+k}, v{152+k}")
    add4(96, 152, 156); pkadd(96, 96, 98)
    a("v_add_f32 v17, v96, v97")
    fold(16, 17, 18, 1); fold(32, 17, 18, 1)
    a(f"ds_write_b32 v26, v17 offset:{LS}\nds_write_b32 v30, v31 offset:{FLG+FL1}")
    for k in range(4): a(f"v_cvt_pk_bf16_f32 v{96+k}, v{152+2*k}, v{153+2*k}")
    for s in range(4):
        for k in range(4): a(f"v_cndmask_b32 v{128+4*s+k}, 0, v{96+k}, s[{74+2*s}:{75+2*s}]")
    stamp(4)
    a("""s_cbranch_execz L_pv
    s_bitset1_b32 s72, 2
    s_bitcmp1_b32 s72, 0
    s_cbranch_scc0 L_ev
    L_pv:""")
    for p in range(4):
        a(f"s_waitcnt vmcnt({6-2*p})")
        if p == 3: stamp(5)
        for i in range(8):
            a(f"v_perm_b32 v{64+4*i+p}, v{32+4*(2*p+1)+(i>>1)}, v{32+4*(2*p)+(i>>1)}, {'s34' if i & 1 else 's33'}")
    for aa in range(2):
        for s in range(4):
            i = 2 * s + aa
            c = "0" if s == 0 else f"v[{152+4*aa}:{155+4*aa}]"
            a(f"v_mfma_f32_16x16x32_bf16 v[{152+4*aa}:{155+4*aa}], v[{64+4*i}:{67+4*i}], v[{128+4*s}:{131+4*s}], {c}")
    a(f"""ds_write_b128 v29, v[152:155]
    ds_write_b128 v29, v[156:159] offset:1024
    ds_write_b32 v30, v31 offset:{FLG}
    s_waitcnt lgkmcnt(0)""")
    stamp(6)
    a(f"""s_cbranch_execnz L_pf
    s_mov_b64 exec, -1
    s_branch L_att
    L_pf:""")
    a("s_branch L_F0")


    sec('Me')
    a(f"""L_X:
    s_mov_b32 s3, 12
    s_cmp_eq_u32 s35, 11
    s_cbranch_scc1 L_T
    s_setprio 3
    s_and_b32 s6, s5, 1
    s_lshl_b32 s7, s4, 1
    s_add_u32 s6, s6, s7
    s_bfe_u32 s7, s5, 0x20001
    v_lshlrev_b32 v12, 3, v2
    v_and_b32 v13, 1, v1
    v_lshl_add_u32 v13, v13, 10, v12
    v_lshrrev_b32 v14, 5, v0
    v_lshl_add_u32 v61, v14, 7, v13
    s_lshl_b32 s28, s7, 8
    v_mul_u32_u24 v14, {16*6144}, v1
    v_add_u32 v14, v14, v12
    s_mul_i32 s30, s7, {128*6144}
    s_lshl_b32 s31, s6, 7
    s_add_u32 s30, s30, s31
    s_waitcnt lgkmcnt(0)
    s_load_dword s83, s[62:63], 0""")
    if stamps: a("s_mov_b32 s46, 11")
    srd(20, P_C, 2048); srd(8, P_WM, 512 * 6144)
    a(f"buffer_load_dwordx2 v[52:53], v61, {SC}, s28 offen")
    wloads(64, 32, "v14", SA, "s30", [((jj >> 4) * 64 + (jj & 15)) * 6144 for jj in range(32)], w=2)
    a(f"""v_lshrrev_b32 v13, 2, v2
    v_mul_u32_u24 v25, 48, v13
    v_mov_b32 v16, 0
    v_mov_b32 v17, 0
    v_mov_b32 v18, 0
    v_mov_b32 v19, 0
    v_mov_b32 v20, 0xff800000
    v_add_u32 v29, {KT+10*8192}, v3
    v_mov_b32 v63, {FLG}
    ds_write_b32 v25, v20 offset:{MX+40}
    ds_write_b32 v25, v16 offset:{LS+40}
    ds_write_b128 v29, v[16:19]
    ds_write_b128 v29, v[16:19] offset:1024
    ds_write_b32 v63, v63 offset:40
    ds_write_b32 v63, v63 offset:{FL1+40}
    s_waitcnt lgkmcnt(0)
    s_barrier""")
    stamp(1)
    srd(16, P_WS, WS_BYTES)
    selsetup(); tagsetup()
    a(f"""v_and_b32 v60, 31, v0
    v_lshlrev_b32 v60, 4, v60
    s_lshl_b32 s73, s6, 2
    s_add_u32 s73, s73, s7
    s_lshl_b32 s73, s73, 9
    s_add_u32 s73, s73, {HM_E}
    v_lshlrev_b32 v58, 3, v0
    v_bfe_u32 v59, v2, 2, 1
    v_lshlrev_b32 v59, 7, v59
    v_lshl_add_u32 v59, v1, 5, v59
    s_waitcnt vmcnt(32)""")
    unpack4(32, 52)
    silu(4, 32, 32, 36)
    a(f"""v_cvt_pk_bf16_f32 v56, v32, v33
    v_cvt_pk_bf16_f32 v57, v34, v35
    ds_write_b64 v58, v[56:57] offset:{SH+4096}
    ds_read_b128 v[16:19], v59 offset:{SH+4096}
    ds_read_b128 v[20:23], v59 offset:{SH+4096+16}
    ds_read_b128 v[24:27], v59 offset:{SH+4096+256}
    ds_read_b128 v[28:31], v59 offset:{SH+4096+272}
    s_waitcnt lgkmcnt(0)""")
    gemv(16, 16, [64], [44], waits=[30 - 2 * m for m in range(16)])
    encode(44)
    a(f"""s_mov_b32 exec_hi, 0
    buffer_store_dwordx4 v[44:47], v60, {SW}, s73 offen sc1
    s_mov_b32 exec_hi, -1""")
    stamp(2)
    a("s_branch L_X2\nL_exit0:\ns_endpgm")

    sec('W')
    a(f"""L_W:
    s_cmp_eq_u32 s3, 11
    s_cbranch_scc1 L_exit0
    s_cmp_eq_u32 s3, {99 if dryq else 8}
    s_cbranch_scc1 L_exit0
    s_cmp_ge_u32 s3, 8
    s_cbranch_scc1 L_Wx
    v_lshlrev_b32 v12, 3, v2
    v_and_b32 v14, 1, v1
    v_lshl_add_u32 v12, v14, 10, v12
    v_lshrrev_b32 v15, 5, v0
    v_lshl_add_u32 v12, v15, 2, v12
    s_lshl_b32 s32, s3, 7
    v_lshlrev_b32 v14, 10, v14
    v_lshl_add_u32 v14, v15, 9, v14
    v_lshl_add_u32 v14, v2, 5, v14
    v_and_b32 v60, 31, v0
    v_lshlrev_b32 v53, 1, v60
    v_lshl_add_u32 v13, v15, 10, v53
    s_lshr_b32 s7, s5, 2
    s_lshl_b32 s7, s7, 8
    s_lshl_b32 s29, s3, 5
    s_add_u32 s7, s7, s29
    s_lshl_b32 s29, s7, 1
    s_waitcnt lgkmcnt(0)
    s_load_dword s83, s[62:63], 0""")
    if stamps: a("s_mov_b32 s46, s3")
    srd(24, P_X, 2048); srd(20, P_C, 2048)
    a(f"""buffer_load_dword v54, v12, {SD}, s32 offen
    buffer_load_dwordx4 v[112:115], v14, {SD}, 0 offen
    buffer_load_dwordx4 v[116:119], v14, {SD}, 0 offen offset:16
    buffer_load_ushort v55, v13, {SC}, s29 offen
    v_lshl_add_u32 v53, v15, 6, v53""")
    def woloads():
        srd(8, P_WO, 4096 * 1024)
        a(f"""v_lshrrev_b32 v12, 3, v2
        v_and_b32 v15, 7, v2
        v_lshlrev_b32 v15, 4, v15
        v_lshl_add_u32 v13, v1, 2, v12
        v_lshl_add_u32 v13, v13, 13, v15
        s_lshl_b32 s31, s4, 9
        s_lshr_b32 s28, s3, 1
        s_lshl_b32 s29, s28, 7
        s_add_u32 s31, s31, s29
        s_and_b32 s29, s3, 1
        s_add_u32 s31, s31, s29
        s_lshl_b32 s31, s31, 10
        s_lshl_b32 s29, s5, 7
        s_add_u32 s31, s31, s29""")
        wloads(128, 8, "v13", SA, "s31", [(16 * (m & 1) + 2 * (m >> 1)) * 1024 for m in range(8)])
    if woe: woloads()
    srd(12, P_WQ, 512 * 8192)
    vo64(52, 8192, 14)
    a("""s_lshl_b32 s31, s3, 19
    s_lshl_b32 s29, s4, 10
    s_add_u32 s31, s31, s29
    s_lshl_b32 s29, s5, 7
    s_add_u32 s31, s31, s29""")
    a(f"s_cmp_ge_u32 s3, {wsplit}\ns_cbranch_scc1 L_nw1")
    wloads(64, 8, "v52", SB, "s31", [2 * m * 8192 for m in range(8)])
    a("L_nw1:")
    srd(16, P_WS, WS_BYTES)
    selsetup(); shufsetup()
    a(f"""v_add_u32 v53, s28, v53
    v_lshlrev_b32 v60, 4, v60
    s_lshl_b32 s29, s3, 9
    v_add_u32 v20, s29, v60
    v_lshrrev_b32 v61, 5, v0
    v_lshl_add_u32 v61, v61, 14, v60
    s_lshl_b32 s30, s3, 11
    s_add_u32 s30, s30, {HM_E}""")
    tagsetup()
    a(f"s_waitcnt vmcnt({16 if woe else 8})\ns_cmp_lt_u32 s3, {wsplit}\ns_cbranch_scc1 L_nw2\ns_waitcnt vmcnt({8 if woe else 0})\nL_nw2:")
    unpack2(164, 54)
    ln_full(112, 96, 164, 16, 36)
    stamp(5)
    a(f"s_cmp_lt_u32 s3, {wsplit}\ns_cbranch_scc1 L_nw3")
    wloads(64, 8, "v52", SB, "s31", [2 * m * 8192 for m in range(8)])
    a("L_nw3:\ns_barrier\nL_Q:")
    def preq():
        a("v_lshlrev_b32 v32, 16, v55")
        silu(1, 32, 32, 36)
        a("v_cvt_pk_bf16_f32 v32, v32, v32\nds_write_b16 v53, v32 offset:256")
        fix64(64, 36, after=4); stamp(2)
    spoll([(f"buffer_load_dwordx4 v[{96+4*k}:{99+4*k}], v61, {SW}, s30 offen offset:{512*k} sc1", 96 + 4 * k, None) for k in range(4)], 32, pre=preq)
    stamp(3)
    add4(96, 96, 100); add4(104, 104, 108); add4(96, 96, 104)
    a("v_permlane32_swap_b32 v96, v98\nv_permlane32_swap_b32 v97, v99")
    round4(96, 96, 36)
    a("v_pk_add_f32 v[98:99], v[98:99], 1.0 op_sel_hi:[1,0]")
    round2(98, 98, 36)
    pkmul(98, 98, 16)
    round2(98, 98, 36)
    pkadd(98, 98, 96)
    a("v_cvt_pk_bf16_f32 v55, v98, v99")
    shuffle(55)
    gemv(8, 24, [64], [44])
    a(f"ds_write_b128 v20, v[44:47] offset:{RED}")
    barrier_nd()
    a("s_cbranch_execz L_exit")
    srd(12, P_WM, 512 * 6144)
    a(f"""s_mul_i32 s30, s7, 6144
    s_and_b32 s28, s5, 3
    s_lshl_b32 s29, s28, 7
    s_add_u32 s30, s30, s29
    s_lshl_b32 s29, s4, 9
    s_add_u32 s30, s30, s29
    s_add_u32 s30, s30, 2048
    v_lshrrev_b32 v12, 3, v2
    v_lshl_add_u32 v14, v1, 3, v12
    v_mul_u32_u24 v14, 6144, v14
    v_and_b32 v15, 7, v2
    v_lshlrev_b32 v15, 4, v15
    v_add_u32 v14, v14, v15
    s_barrier""")
    wloads(64, 4, "v14", SB, "s30", [2 * m * 6144 for m in range(4)])
    if not woe: woloads()
    a("s_lshr_b32 s28, s3, 1")
    a(f"""v_lshlrev_b32 v61, 4, v2
    v_lshl_add_u32 v61, v1, 11, v61
    s_mul_i32 s30, s4, {24*2048}
    s_lshl_b32 s29, s3, 8
    s_add_u32 s30, s30, s29
    s_add_u32 s30, s30, {HA}
    v_and_b32 v13, 3, v2
    v_min_u32 v14, 2, v13
    v_bfe_u32 v15, v2, 2, 1
    v_mul_u32_u24 v52, 12, v15
    v_lshl_add_u32 v52, v14, 2, v52
    v_add_u32 v52, v52, v1
    v_lshlrev_b32 v52, 7, v52
    s_mul_i32 s31, s4, {24*128}
    s_lshl_b32 s29, s28, 4
    s_add_u32 s31, s31, s29
    s_add_u32 s31, s31, {HML}
    s_mov_b32 s74, 0x77777777
    s_mov_b32 s75, 0x77777777
    s_mov_b32 s82, 0
    s_lshl_b32 s28, s3, 9
    s_add_u32 s29, s28, {SH}
    v_lshlrev_b32 v54, 6, v15
    v_lshl_add_u32 v54, v1, 4, v54
    v_add_u32 v54, s29, v54
    ds_read_b128 v[24:27], v54 offset:256""")
    for j in range(1, 6): a(f"s_add_u32 s{75+j}, s30, {j*8192}")
    if woe: fix64(128, 36)
    fix64(64, 36, after=(0 if woe else 8), n=4)
    a("s_waitcnt lgkmcnt(0)")
    gemv(4, 24, [64], [44])
    a(f"ds_write_b128 v20, v[44:47] offset:{RED+4096}\ns_waitcnt lgkmcnt(0)\ns_barrier")
    if not woe: fix64(128, 36, after=0)
    stamp(7)
    a("L_WO:")
    def scales():
        stamp(1)
        a(f"""v_max_f32_dpp v36, v48, v48 quad_perm:[1,0,3,2] {DPPM}
        v_max_f32_dpp v36, v36, v36 quad_perm:[2,3,0,1] {DPPM}""")
        fold(16, 36, 33, 1, "v_max_f32"); fold(32, 36, 33, 1, "v_max_f32")
        a(f"""v_sub_f32 v36, v48, v36
        v_mul_f32 v36, {LOG2E}, v36
        v_exp_f32 v36, v36
        v_cndmask_b32 v49, 0, v49, s[74:75]
        v_mul_f32 v33, v36, v49
        v_add_f32_dpp v33, v33, v33 quad_perm:[1,0,3,2] {DPPM}
        v_add_f32_dpp v33, v33, v33 quad_perm:[2,3,0,1] {DPPM}""")
        fold(16, 33, 34, 1); fold(32, 33, 34, 1)
        a("v_rcp_f32 v33, v33\nv_mul_f32 v36, v36, v33")
        for j in range(6): a(f"v_mov_b32_dpp v{24+j}, v36 row_newbcast:{4*(j//3)+j%3} {DPPM}")
    OBs = [96 + 4 * j for j in range(6)]
    oload = lambda j: f"buffer_load_dwordx4 v[{OBs[j]}:{OBs[j]+3}], v22, {SW}, {'s30' if j == 0 else 's%d' % (75+j)} offen sc1"
    def pretouch():
        a(f"v_add_u32 v22, {LOC if dual else 0}, v61")
        for j in range(6): a(oload(j))
    spoll([(f"buffer_load_dwordx4 v[48:51], v23, {SW}, s31 offen sc1", 48, scales)], 32, twos=((23, 52),), pre=pretouch)
    spoll([(oload(j), OBs[j], None) for j in range(6)], 32, twos=((22, 61),))
    stamp(6)
    for jj in range(3):
        for b in range(2):
            j = 3 * b + jj
            sc = 24 + (j & ~1)
            for h in range(2):
                d = 32 + 4 * b + 2 * h
                sel = "op_sel:[0,1,0] op_sel_hi:[1,1,1]" if j & 1 else "op_sel_hi:[1,0,1]"
                if jj == 0:
                    sel = "op_sel:[0,1] op_sel_hi:[1,1]" if j & 1 else "op_sel_hi:[1,0]"
                    a(f"v_pk_mul_f32 {pr(d)}, {pr(OBs[j]+2*h)}, {pr(sc)} {sel}")
                else:
                    a(f"v_pk_fma_f32 {pr(d)}, {pr(OBs[j]+2*h)}, {pr(sc)}, {pr(d)} {sel}")
    for k in range(4): a(f"v_permlane16_swap_b32 v{32+k}, v{36+k}")
    add4(32, 32, 36)
    halve32(32)
    a("v_cvt_pk_bf16_f32 v55, v32, v33")
    shuffle(55)
    gemv(8, 24, [128], [44])
    a(f"ds_write_b128 v20, v[44:47] offset:{RED+8192}")
    barrier_nd()
    a("s_cbranch_execz L_exit\ns_branch L_end")

    a(f"""L_R:
    s_setprio 3
    s_waitcnt lgkmcnt(0)
    s_load_dword s83, s[62:63], 0""")
    if stamps: a("s_mov_b32 s46, 9")
    srd(16, P_WS, WS_BYTES)
    a(f"""v_and_b32 v21, 31, v0
    v_lshlrev_b32 v21, 4, v21
    v_lshrrev_b32 v12, 5, v0
    v_lshl_add_u32 v21, v12, 11, v21
    v_and_b32 v52, 7, v2
    v_lshlrev_b32 v52, 5, v52
    v_lshrrev_b32 v12, 3, v2
    v_lshl_add_u32 v52, v12, 4, v52
    v_and_b32 v58, 1, v1
    v_lshl_add_u32 v62, v58, 11, v52
    v_lshl_add_u32 v63, v58, 8, v52
    s_lshl_b32 s73, s4, 12
    s_lshl_b32 s28, s5, 8
    s_add_u32 s73, s73, s28
    s_add_u32 s73, s73, {HQ}
    s_add_u32 s74, s73, {LOC}
    s_and_b32 s75, s4, 1
    s_lshl_b32 s75, s75, 2
    s_and_b32 s28, s5, 3
    s_add_u32 s75, s75, s28
    s_lshl_b32 s75, s75, 3
    s_and_b32 s28, s5, 4
    s_add_u32 s75, s75, s28
    s_lshr_b32 s28, s4, 1
    s_add_u32 s75, s75, s28
    s_lshl_b32 s75, s75, 9
    s_add_u32 s75, s75, {HM_L}
    s_lshl_b32 s78, s5, 12
    s_lshl_b32 s29, s4, 9
    s_add_u32 s78, s78, s29
    s_add_u32 s78, s78, {HW}""")
    tagsetup()
    a("s_barrier")
    if dry: a("s_mov_b64 exec, 0")
    a("L_R1:")
    for ph in range(3):
        barrier_nd()
        for k in range(4): a(f"ds_read_b128 v[{32+4*k}:{35+4*k}], v21 offset:{RED+4096*ph+512*k}")
        a("s_waitcnt lgkmcnt(0)")
        add4(32, 32, 36); add4(40, 40, 44); add4(32, 32, 40)
        fold(32, 32, 36)
        if ph == 0: round4(32, 32, 36)
        encode(32, ph != 0)
        S = lab("rs")
        a(f"s_cbranch_execz {S}\ns_mov_b32 exec_hi, 0")
        if ph == 0 and dual: a(f"buffer_store_dwordx4 v[32:35], v62, {SW}, s74 offen")
        a(f"buffer_store_dwordx4 v[32:35], {'v62' if ph == 0 else 'v63'}, {SW}, {('s73', 's75', 's78')[ph]} offen sc1\ns_mov_b32 exec_hi, -1")
        stamp((4, 14, 9)[ph])
        if ph == 0: a("s_barrier")
        if ph == 2 and wbl: a("s_cmp_lg_u32 s5, 0\ns_cbranch_scc1 L_end\ns_waitcnt vmcnt(0)\nbuffer_wbl2 sc1\ns_waitcnt vmcnt(0)")
        if ph == 2: a("s_branch L_end")
        a(f"{S}:")
    a("s_mov_b64 exec, -1\ns_branch L_R1")
    a("L_Wx:\ns_cmp_eq_u32 s3, 9\ns_cbranch_scc1 L_R")
    if dry:
        a("""s_waitcnt lgkmcnt(0)
        s_mov_b64 exec, 0
        s_cmp_eq_u32 s3, """ + ("8" if dryq else "99") + """
        s_cbranch_scc1 L_Q
        s_cmp_lg_u32 s3, 10
        s_cbranch_scc1 L_exit
        s_barrier
        s_branch L_WO""")
    else:
        a("s_endpgm")

    sec('F')
    def floads():
        S = lab("nf")
        a(f"""v_and_b32 v36, 4, v2
        v_cmp_eq_u32 vcc, 0, v36
        v_mov_b32 v36, s{P_WU}
        v_mov_b32 v38, s{P_WG}
        v_cndmask_b32 v36, v36, v38, vcc
        v_mov_b32 v37, s{P_WU+1}
        v_mov_b32 v38, s{P_WG+1}
        v_cndmask_b32 v37, v37, v38, vcc
        v_lshrrev_b32 v39, 3, v2
        v_lshl_add_u32 v38, v1, 4, v39
        v_mul_u32_u24 v38, 3584, v38
        v_and_b32 v35, 3, v2
        v_lshl_add_u32 v38, v35, 4, v38
        s_mul_i32 s28, s3, {64*3584}
        s_lshl_b32 s29, s6, 6
        s_add_u32 s28, s28, s29
        v_add_u32 v38, s28, v38
        v_add_co_u32 v36, vcc, v36, v38
        v_addc_co_u32 v37, vcc, 0, v37, vcc
        s_mov_b32 s28, 7168
        s_mov_b32 s29, 0
        v_lshl_add_u32 v39, v1, 3, v39
        v_and_b32 v35, 7, v2
        v_lshlrev_b32 v35, 4, v35
        v_lshl_add_u32 v39, v39, 10, v35""")
        spin(OST, 28, 32)
        stamp(9)
        for m in range(8):
            a(f"global_load_dwordx4 v[{96+4*m}:{99+4*m}], v[36:37], off {nt}")
            if m < 7: a("v_lshl_add_u64 v[36:37], v[36:37], 0, s[28:29]")
        srd(20, P_WD, 1792 * 1024)
        a("s_lshl_b32 s28, s6, 15\ns_add_u32 s28, s28, s32")
        for m in range(4): a(f"s_add_u32 s29, s28, {2048*m}\nbuffer_load_dwordx4 v[{128+4*m}:{131+4*m}], v39, {SC}, s29 offen {nt}")
        a(f"{S}:")
    def mhook(k):
        def h():
            halve32(144 + 4 * k)
            if k == 2:
                round2(144 + 4 * k, 144 + 4 * k, 33)
                a(f"v_pk_add_f32 {pr(144+4*k)}, {pr(144+4*k)}, 1.0 op_sel_hi:[1,0]")
            round2(12 + 2 * k, 144 + 4 * k, 33)
        return h
    a(f"""L_F0:
    s_cmp_eq_u32 s35, 11
    s_cbranch_scc1 L_end
    s_cmp_ge_u32 s3, 8
    s_cbranch_scc1 L_end
    s_setprio 0
    s_sub_u32 s5, s5, 24
    s_lshl_b32 s6, s4, 3
    s_add_u32 s6, s6, s5
    s_cmp_ge_u32 s6, 56
    s_cbranch_scc1 L_end
    v_lshlrev_b32 v12, 3, v2
    v_and_b32 v14, 1, v1
    v_lshl_add_u32 v12, v14, 10, v12
    v_lshrrev_b32 v15, 5, v0
    v_lshl_add_u32 v12, v15, 2, v12
    s_lshl_b32 s32, s3, 7""")
    srd(24, P_X, 2048)
    a(f"buffer_load_dword v55, v12, {SD}, s32 offen")
    selsetup(); shufsetup()
    a(f"""v_and_b32 v60, 31, v0
    v_lshlrev_b32 v60, 4, v60
    v_lshrrev_b32 v21, 5, v0
    v_lshl_add_u32 v21, v21, 11, v60
    v_mov_b32 v60, v21
    s_mov_b32 s34, 0
    s_mov_b32 s35, -1
    v_lshrrev_b32 v12, 3, v2
    v_and_b32 v13, 3, v2
    v_bfe_u32 v15, v2, 2, 1
    s_lshl_b32 s28, s3, 9
    s_add_u32 s29, s28, {SH}
    v_lshlrev_b32 v54, 6, v15
    v_lshl_add_u32 v54, v1, 4, v54
    v_add_u32 v54, s29, v54
    v_lshrrev_b32 v16, 5, v0
    v_and_b32 v17, 1, v1
    v_lshl_add_u32 v14, v12, 2, v13
    v_lshl_add_u32 v14, v17, 3, v14
    v_lshl_add_u32 v14, v14, 1, v16
    v_lshlrev_b32 v63, 3, v15
    v_lshl_add_u32 v63, v14, 4, v63
    v_add_u32 v63, s28, v63
    v_and_b32 v14, 6, v2
    v_lshlrev_b32 v53, 3, v14
    v_lshl_add_u32 v53, v12, 3, v53
    v_and_b32 v14, 1, v2
    v_lshl_add_u32 v53, v14, 2, v53
    v_lshl_add_u32 v53, v16, 1, v53
    v_lshl_add_u32 v53, v17, 6, v53
    v_add_u32 v53, s29, v53
    v_lshl_add_u32 v160, s3, 10, v3
    v_lshl_add_u32 v14, v17, 1, v15
    v_mul_u32_u24 v62, 7168, v14
    v_lshl_add_u32 v62, v13, 5, v62
    v_lshl_add_u32 v62, v12, 4, v62
    s_mul_i32 s73, s3, {4*7168}
    s_lshl_b32 s29, s6, 7
    s_add_u32 s73, s73, s29
    s_add_u32 s73, s73, {HF}
    s_lshl_b32 s81, s3, 12
    s_add_u32 s72, s81, {HM_L}
    s_add_u32 s81, s81, {HW}""")
    floads()
    def pref():
        fix64(96, 48, after=8); fix64(128, 48, after=4, n=4); unpack2(164, 55); stamp(14)
    spoll([(f"buffer_load_dwordx4 v[{144+4*k}:{147+4*k}], v60, {SW}, s72 offen offset:{512*k} sc1", 144 + 4 * k, mhook(k)) for k in range(4)], 32, pre=pref, guard=False)
    a("L_F:")
    stamp(10)
    spoll([(f"buffer_load_dwordx4 v[{32+4*k}:{35+4*k}], v3, {SW}, s81 offen offset:{1024*k} sc1", 32 + 4 * k, None) for k in range(4)], 48)
    stamp(11)
    add4(32, 32, 36); add4(40, 40, 44); add4(32, 32, 40)
    halve32(32)
    round2(32, 32, 36)
    pkmul(32, 32, 12)
    round2(32, 32, 36)
    pkadd(32, 32, 164)
    round2(22, 32, 36)
    a(f"ds_write_b64 v160, v[22:23] offset:{XG}\nds_write_b64 v160, v[18:19] offset:{XG+8}")
    ln2(22, 32, 36)
    pkmul(32, 32, 16)
    round2(32, 32, 36)
    pkadd(32, 32, 14)
    a("v_cvt_pk_bf16_f32 v55, v32, v33")
    shuffle(55)
    gemv(8, 24, [96], [44])
    a(f"v_cndmask_b32 v44, v44, v46, s[34:35]\nv_cndmask_b32 v45, v45, v47, s[34:35]\nds_write_b64 v63, v[44:45] offset:{RED+12288}")
    barrier_nd()
    for k in range(4): a(f"ds_read_b128 v[{32+4*k}:{35+4*k}], v21 offset:{RED+12288+512*k}")
    a("s_waitcnt lgkmcnt(0)")
    add4(32, 32, 36); add4(40, 40, 44); add4(32, 32, 40)
    a("""v_permlane32_swap_b32 v32, v33
    v_permlane32_swap_b32 v34, v35
    v_add_f32 v32, v32, v33
    v_add_f32 v33, v34, v35""")
    round2(32, 32, 36)
    silu(1, 34, 32, 36)
    a("""v_cvt_pk_bf16_f32 v34, v34, v34
    v_and_b32 v34, s70, v34
    v_mul_f32 v34, v34, v33
    v_cvt_pk_bf16_f32 v34, v34, v34
    ds_write_b16 v53, v34
    ds_read_b128 v[24:27], v54
    s_waitcnt lgkmcnt(0)""")
    gemv(4, 24, [128], [44])
    encode(44)
    a(f"""s_cbranch_execz L_FF
    s_mov_b32 exec_hi, 0
    buffer_store_dwordx4 v[44:47], v62, {SW}, s73 offen sc1
    s_mov_b32 exec_hi, -1""")
    stamp(12)
    a(f"""s_cmp_ge_u32 s6, 32
    s_cbranch_scc1 L_end
    s_cmp_eq_u32 s3, 7
    s_cbranch_scc1 L_end
    s_mul_i32 s76, s6, 7168
    s_lshl_b32 s28, s3, 10
    s_add_u32 s76, s76, s28
    s_add_u32 s76, s76, {HF}
    s_lshl_b32 s28, s3, 8
    v_lshlrev_b32 v36, 2, v0
    v_add_u32 v36, s28, v36
    s_waitcnt vmcnt(0)
    L_FF:""")
    poll([f"buffer_load_dwordx4 v[44:47], v3, {SW}, s76 offen sc1"], [44], 32)
    stamp(13)
    halve32(44)
    a(f"""v_permlane16_swap_b32 v44, v45
    v_add_f32 v44, v44, v45
    ds_write_b32 v36, v44 offset:{RED}""")
    barrier_nd()
    a("s_cbranch_execz L_X3\ns_branch L_end")

    a(f"""L_X2:
    s_sub_u32 s5, s5, 24
    s_lshl_b32 s6, s4, 3
    s_add_u32 s6, s6, s5
    s_cmp_ge_u32 s6, 56
    s_cbranch_scc1 L_end
    v_and_b32 v58, 1, v1
    s_mul_i32 s76, s6, 7168
    s_add_u32 s76, s76, {HF}
    s_add_u32 s77, s76, 4096
    s_and_b32 s28, s6, 3
    s_lshl_b32 s28, s28, 3
    v_and_b32 v56, 0x27, v0
    v_add_u32 v56, s28, v56
    s_lshr_b32 s29, s6, 2
    s_lshl_b32 s32, s29, 7
    s_lshl_b32 s29, s29, 10
    v_lshlrev_b32 v59, 4, v56
    v_lshl_add_u32 v59, v58, 2, v59
    v_add_u32 v59, s29, v59
    v_and_b32 v57, 15, v56
    v_lshlrev_b32 v57, 3, v57
    v_bfe_u32 v12, v56, 4, 1
    v_lshl_add_u32 v57, v12, 10, v57
    v_lshrrev_b32 v12, 5, v56
    v_lshl_add_u32 v57, v12, 2, v57
    v_lshl_add_u32 v57, v58, 1, v57""")
    srd(24, P_OUT, 2048)
    if dry: a("s_mov_b64 exec, 0\ns_branch L_F")
    a("L_X3:\ns_cbranch_execz L_X4\ns_cmp_ge_u32 s6, 32\ns_cbranch_scc1 L_end\ns_barrier\ns_barrier\nL_X4:")
    a(f"ds_read_b32 v40, v59 offset:{XG}\nds_read_b32 v42, v59 offset:{XG+8}\ns_waitcnt lgkmcnt(0)")
    a("v_lshlrev_b32 v36, 2, v0")
    barrier_nd()
    for k in range(3): a(f"ds_read2st64_b32 v[{44+2*k}:{45+2*k}], v36 offset0:{RED//256+2*k} offset1:{RED//256+2*k+1}")
    a(f"ds_read_b32 v50, v36 offset:{RED+6*256}\ns_waitcnt lgkmcnt(0)")
    pkadd(44, 44, 46); pkadd(44, 44, 48)
    a(f"""v_add_f32 v44, v44, v45
    v_add_f32 v44, v44, v50
    v_add_f32_dpp v44, v44, v44 row_ror:8 {DPPM}
    v_cvt_pk_bf16_f32 v44, v44, v44
    v_and_b32 v44, s70, v44
    v_mul_f32 v44, v44, v42
    v_cvt_pk_bf16_f32 v44, v44, v44
    v_and_b32 v44, s70, v44
    v_add_f32 v44, v44, v40
    v_cvt_pk_bf16_f32 v44, v44, v44
    s_cbranch_execz L_dry3
    s_mov_b32 exec_lo, 0x00ff00ff
    s_mov_b32 exec_hi, 0x00ff00ff
    buffer_store_short v44, v57, {SD}, s32 offen {osc}
    s_mov_b64 exec, -1
    s_cmp_lg_u32 s6, 0
    s_cbranch_scc1 L_end
    v_mov_b32 v36, s68
    v_mov_b32 v37, 0
    s_mov_b64 exec, 1
    buffer_store_dword v36, v37, {SW}, 0 offen {osc}
    s_mov_b64 exec, -1
    s_branch L_end
    L_dry3:
    s_mov_b64 exec, -1
    s_branch L_X3""")

    sec('end')
    a("L_end:")
    if dbg:
        a(f"""s_mov_b64 exec, -1
        s_lshr_b32 s28, s2, 3
        s_xor_b32 s28, s28, s2
        s_and_b32 s28, s28, 7
        s_cbranch_scc1 L_exit
        s_and_b32 s28, s46, 6
        s_cmp_eq_u32 s28, 4
        s_cbranch_scc1 L_exit
        s_cmp_eq_u32 s28, 6
        s_cbranch_scc1 L_exit
        s_memrealtime s[84:85]
        s_waitcnt lgkmcnt(0)
        v_writelane_b32 v166, s84, 12
        v_writelane_b32 v166, s86, 1
        s_not_b32 s86, s86
        v_writelane_b32 v166, s86, 0
        v_lshlrev_b32 v37, 2, v0
        s_mov_b64 exec, 0xffff
        global_atomic_umax v37, v166, s[60:61]""")
    elif stamps:
        a(f"""s_mov_b64 exec, -1
        s_memrealtime s[84:85]
        s_waitcnt lgkmcnt(0)
        v_writelane_b32 v166, s84, 8
        v_writelane_b32 v166, s86, 0
        s_lshl_b32 s28, s2, 4
        s_add_u32 s28, s28, s46
        s_lshl_b32 s28, s28, 6
        s_add_u32 s28, s28, {STAMP}
        v_lshlrev_b32 v37, 2, v0
        v_add_u32 v37, s28, v37
        s_mov_b64 exec, 0xffff
        global_store_dword v37, v166, s[62:63]""")
    a("L_exit:\ns_endpgm")

    o = sum([secs[n] for n in ('entry', 'Me', 'W', 'H', 'T', 'F', 'end')], [])
    body = pad(o)
    out = [HEADER.rstrip("\n"),
           "; Fused persistent kernel: 256 workgroups (one per CU), roles by workgroup id, tagged 16-byte hand-offs through d_ws.",
           f"; @launch grid=(256,1,1) block=({NW*64},1,1) lds={LDS_BYTES}",
           '.amdgcn_target "amdgcn-amd-amdhsa--gfx950"', ".text", f".globl {NAME}_kernel", ".p2align 12",
           f".type {NAME}_kernel,@function", f"{NAME}_kernel:"]
    out += [("" if l.endswith(":") else "    ") + l for l in body]
    out += ['.section .rodata,"a"', ".p2align 6", f".amdhsa_kernel {NAME}_kernel",
            "  .amdhsa_next_free_vgpr 168", "  .amdhsa_next_free_sgpr 102", "  .amdhsa_accum_offset 168",
            "  .amdhsa_group_segment_fixed_size 0", "  .amdhsa_kernarg_size 112", "  .amdhsa_user_sgpr_count 2",
            "  .amdhsa_user_sgpr_kernarg_segment_ptr 1", "  .amdhsa_system_sgpr_workgroup_id_x 1",
            "  .amdhsa_float_denorm_mode_32 3", ".end_amdhsa_kernel"]
    return "\n".join(out) + "\n"

if __name__ == "__main__":
    import argparse
    ap = argparse.ArgumentParser()
    ap.add_argument("-o", default="cdna_kernels/" + NAME + ".s")
    ap.add_argument("--stamps", action="store_true")
    ap.add_argument("--kw", default="")
    args = ap.parse_args()
    kw = eval("dict(" + args.kw + ")")
    open(args.o, "w").write(gen(stamps=args.stamps, **kw))
```
